```python
import torch

def _softmax(x, axis=-1):
    return torch.softmax(x, dim=axis)

def _gelu(x):
    return torch.nn.functional.gelu(x, approximate='tanh')

def _silu(x):
    return torch.nn.functional.silu(x)

def _sigmoid(x):
    return torch.sigmoid(x)

def _layernorm(x, axis=-1, eps=1e-05):
    m = x.mean(dim=axis, keepdim=True)
    v = x.var(dim=axis, keepdim=True, unbiased=False)
    return (x - m) / torch.sqrt(v + eps)

def _scatter_add(tgt, idx, src, axis=0):
    return tgt.clone().index_add_(axis, idx, src)

def _segment_sum(src, seg, n):
    out = torch.zeros((n,) + src.shape[1:], dtype=src.dtype)
    return out.index_add_(0, seg, src)

def _pad(x, pw):
    flat = tuple((v for pair in reversed(pw) for v in pair))
    return torch.nn.functional.pad(x, flat)
kernel_name = 'adaLN_cond__mha_block_cached__glu_gated_swiglu__prompt'

def setup_inputs():

    _w = lambda a: (lambda t: t.to(torch.bfloat16) if t.is_floating_point() else t)(torch.as_tensor(a))

    def _A_setup():
        B, Sq, D = (1, 2048, 512)
        H, Sk, Dh = (32, 2048, 128)
        return {'x': _w((lambda *s: torch.randn(*s, dtype=torch.bfloat16) * 0.1)(B, Sq, D)), 'k_cache': _w((lambda *s: torch.randn(*s, dtype=torch.bfloat16) * 0.8)(B, H, Sk, Dh)), 'v_cache': _w((lambda *s: torch.randn(*s, dtype=torch.bfloat16) * 3.2)(B, H, Sk, Dh)), 'wq': _w((lambda *s: torch.randn(*s, dtype=torch.bfloat16) * 0.8)(D, H * Dh) * D ** (-0.5)), 'wo': _w((lambda *s: torch.randn(*s, dtype=torch.bfloat16) * 3.2)(H * Dh, D) * (H * Dh) ** (-0.5))}
    _A_in = _A_setup()

    def _B_setup():
        B, S, D, F = (1, 2048, 512, 1792)
        return {'x': _w((lambda *s: torch.randn(*s, dtype=torch.bfloat16) * 0.1)(B, S, D)), 'w1': _w((lambda *s: torch.randn(*s, dtype=torch.bfloat16) * 3.2)(D, F) * (2.0 / D) ** 0.5), 'w3': _w((lambda *s: torch.randn(*s, dtype=torch.bfloat16) * 3.2)(D, F) * (2.0 / D) ** 0.5), 'w2': _w((lambda *s: torch.randn(*s, dtype=torch.bfloat16) * 3.2)(F, D) * (2.0 / F) ** 0.5)}
    _B_in = _B_setup()
    return {'A_x': _A_in['x'], 'A_k_cache': _A_in['k_cache'], 'A_v_cache': _A_in['v_cache'], 'A_wq': _A_in['wq'], 'A_wo': _A_in['wo'], 'B_x': _B_in['x'], 'B_w1': _B_in['w1'], 'B_w3': _B_in['w3'], 'B_w2': _B_in['w2'], 'c': _w((lambda *s: torch.randn(*s, dtype=torch.bfloat16) * 0.8)(1, 512) * 8.0), 'w_mod': _w((lambda *s: torch.randn(*s, dtype=torch.bfloat16) * 0.8)(512, 6 * 512) * 512 ** (-0.5) * 8.0)}

def reference(A_x, A_k_cache, A_v_cache, A_wq, A_wo, B_x, B_w1, B_w3, B_w2, c, w_mod):

    def _A_ref(x, k_cache, v_cache, wq, wo):
        B, Sq, D = x.shape
        H, Dh = (32, 128)
        q = (lambda x, *d: x.permute(*d))((x @ wq).reshape(B, Sq, H, Dh), 0, 2, 1, 3)
        scores = torch.einsum('bhqd,bhkd->bhqk', q, k_cache) * Dh ** (-0.5)
        p = _softmax(scores, axis=-1)
        o = torch.einsum('bhqk,bhkd->bhqd', p, v_cache)
        return (lambda x, *d: x.permute(*d))(o, 0, 2, 1, 3).reshape(B, Sq, H * Dh) @ wo

    def _B_ref(x, w1, w3, w2):
        gate = torch.einsum('bsd,df->bsf', x, w1)
        up = torch.einsum('bsd,df->bsf', x, w3)
        h = _silu(gate) * up
        out = torch.einsum('bsf,fd->bsd', h, w2)
        return out
    x = A_x
    mod = (_silu(c) @ w_mod).reshape(c.shape[0], 6, 1, -1)
    sa, ca, ga, sb, cb, gb = (mod[:, 0].clone(), mod[:, 1].clone(), mod[:, 2].clone(), mod[:, 3].clone(), mod[:, 4].clone(), mod[:, 5].clone())
    h = _layernorm(x, axis=-1) * (1 + ca) + sa
    x = x + ga * _A_ref(h, A_k_cache, A_v_cache, A_wq, A_wo)
    h = _layernorm(x, axis=-1) * (1 + cb) + sb
    x = x + gb * _B_ref(h, B_w1, B_w3, B_w2)
    return x
```

```python
import re

class K:
    def __init__(self, name, grid, block, lds=0, vgpr=128, agpr=0, sgpr=96, wgy=False):
        self.name, self.grid, self.block, self.lds = name, grid, block, lds
        self.vgpr, self.agpr, self.sgpr, self.wgy = vgpr, agpr, sgpr, wgy
        self.L = []
        self.nlab = 0
    def e(self, s):
        for l in s.split("\n"):
            l = l.strip()
            if l: self.L.append(l)
    def lab(self, base="L"):
        self.nlab += 1
        return f"{self.name}_{base}{self.nlab}"
    def label(self, l): self.L.append(l + ":")
    def srd(self, d, lo, hi, nbytes, off=0):
        if off:
            self.e(f"s_add_u32 s{d}, s{lo}, {off:#x}")
            self.e(f"s_addc_u32 s{d+1}, s{hi}, 0")
            self.e(f"s_and_b32 s{d+1}, s{d+1}, 0xffff")
        else:
            self.e(f"s_mov_b32 s{d}, s{lo}")
            self.e(f"s_and_b32 s{d+1}, s{hi}, 0xffff")
        self.e(f"s_mov_b32 s{d+2}, {nbytes:#x}")
        self.e(f"s_mov_b32 s{d+3}, 0x20000")
    def text(self):
        out = [f".globl {self.name}", ".p2align 8", f".type {self.name},@function", f"{self.name}:"]
        for l in self.L:
            out.append(l if l.endswith(":") or l.startswith(".") else "  " + l)
        return "\n".join(out)
    def desc(self):
        acc = (self.vgpr + 3) // 4 * 4
        nfv = acc + self.agpr if self.agpr else self.vgpr
        s = f""".amdhsa_kernel {self.name}
  .amdhsa_next_free_vgpr {nfv}
  .amdhsa_next_free_sgpr {self.sgpr}
  .amdhsa_accum_offset {acc}
  .amdhsa_group_segment_fixed_size 0
  .amdhsa_kernarg_size 112
  .amdhsa_user_sgpr_count 2
  .amdhsa_user_sgpr_kernarg_segment_ptr 1
  .amdhsa_system_sgpr_workgroup_id_x 1
"""
        if self.wgy: s += "  .amdhsa_system_sgpr_workgroup_id_y 1\n"
        s += ".end_amdhsa_kernel"
        return s
    def launch(self):
        g = self.grid
        return f"; @launch kernel={self.name} grid=({g[0]},{g[1]},{g[2]}) block=({self.block},1,1) lds={self.lds}"

def R(p, lo, n=1):
    return f"{p}{lo}" if n == 1 else f"{p}[{lo}:{lo+n-1}]"

_reg = re.compile(r"\b([vas])(\d+)\b|\b([vas])\[(\d+):(\d+)\]|\b(vcc|exec|m0|scc)\b")
def regs_of(tok):
    out = []
    for m in _reg.finditer(tok):
        if m.group(1): out.append((m.group(1), int(m.group(2))))
        elif m.group(3): out += [(m.group(3), i) for i in range(int(m.group(4)), int(m.group(5)) + 1)]
        else: out.append((m.group(6), 0))
    return out

TRANS = ("v_exp_f32", "v_log_f32", "v_rcp_f32", "v_rsq_f32", "v_sqrt_f32", "v_sin_f32", "v_cos_f32")
def parse(ins):
    ins = ins.split(";")[0].strip()
    parts = ins.split(None, 1)
    op = parts[0]
    args = [a.strip() for a in parts[1].split(",")] if len(parts) > 1 else []
    d = dict(op=op, defs=[], uses=[], kind="other", text=ins)
    A = [regs_of(a) for a in args]
    if op.startswith("v_mfma"):
        d["kind"] = "mfma"; d["defs"] = A[0]; d["a"] = A[1]; d["b"] = A[2]; d["c"] = A[3]
        d["uses"] = A[1] + A[2] + A[3]
        d["passes"] = 8 if "32x32" in op else 4
    elif op.startswith("ds_read") or op.startswith("ds_bpermute") or op.startswith("ds_swizzle") or op.startswith("ds_permute"):
        d["kind"] = "ds"; d["defs"] = A[0]; d["uses"] = sum(A[1:], [])
    elif op.startswith("ds_write") or op.startswith("ds_add") :
        d["kind"] = "ds"; d["uses"] = sum(A, []); d["store"] = True
    elif op.startswith(("buffer_load", "global_load")):
        d["kind"] = "vmem"
        if " lds" in ins or "_lds_" in op:
            d["uses"] = sum(A, []) + [("m0", 0)]; d["dma"] = True
        else:
            d["defs"] = A[0]; d["uses"] = sum(A[1:], [])
    elif op.startswith(("buffer_store", "global_store", "buffer_atomic", "global_atomic")):
        d["kind"] = "vmem"; d["uses"] = sum(A, []); d["store"] = True
        d["data"] = A[0] if op.startswith("buffer") else A[1]
        d["wide"] = ("x3" in op or "x4" in op)
    elif op.startswith(("s_load", "s_buffer_load", "s_memtime", "s_memrealtime")):
        d["kind"] = "smem"; d["defs"] = A[0]; d["uses"] = sum(A[1:], [])
    elif op.startswith("v_"):
        d["kind"] = "valu"
        if op.startswith("v_cmp"):
            d["defs"] = A[0]; d["uses"] = sum(A[1:], [])
            if op.startswith("v_cmpx"): d["defs"] += [("exec", 0)]
        elif op.startswith(("v_permlane32_swap", "v_permlane16_swap", "v_swap")):
            d["defs"] = A[0] + A[1]; d["uses"] = A[0] + A[1]; d["perm"] = True
        elif op.startswith(("v_add_co", "v_sub_co", "v_addc_co", "v_subb_co", "v_subrev_co")):
            d["defs"] = A[0] + A[1]; d["uses"] = sum(A[2:], [])
        else:
            d["defs"] = A[0]; d["uses"] = sum(A[1:], [])
            if op.startswith(("v_fmac", "v_dot2c", "v_pk_fmac", "v_writelane")): d["uses"] += A[0]
            if op.startswith("v_cndmask") and len(A) == 3: d["uses"] += [("vcc", 0)]
        d["trans"] = op.replace("_e32", "").replace("_e64", "") in TRANS
        d["dpp"] = ("_dpp" in op) or ("row_" in ins) or ("quad_perm" in ins) or ("wave_" in ins)
        d["rdlane"] = op.startswith(("v_readlane", "v_readfirstlane"))
    elif op.startswith("s_"):
        d["kind"] = "salu"
        if op in ("s_waitcnt", "s_barrier", "s_nop", "s_endpgm", "s_setprio", "s_branch", "s_sleep") or op.startswith("s_cbranch"):
            d["kind"] = "ctl"
        elif op.startswith("s_cmp") or op.startswith("s_bitcmp"):
            d["uses"] = sum(A, [])
        else:
            d["defs"] = A[0] if A else []; d["uses"] = sum(A[1:], [])
            if "saveexec" in op: d["defs"] += [("exec", 0)]
    return d

def ws_of(d):
    if d["op"] == "s_nop": return int(d["text"].split()[1], 0) + 1
    return 1

def check_seq(seq, name="", strict_wait=True):
    P = [parse(s) for s in seq if not s.endswith(":") and not s.startswith(".")]
    probs = []
    for i, c in enumerate(P):
        if c["kind"] in ("ctl",) : continue
        dist = 0
        for j in range(i - 1, max(-1, i - 40), -1):
            p = P[j]
            need = 0; why = ""
            pd = set(p["defs"]); cu = set(c["uses"]); cd = set(c["defs"])
            vd = {r for r in pd if r[0] in "va"}
            sd = {r for r in pd if r[0] in ("s", "vcc")}
            if p["kind"] == "valu":
                if c["kind"] == "mfma" and vd & cu: need, why = 2, "valu->mfma"
                if c["kind"] == "valu":
                    if p.get("trans") and not c.get("trans") and vd & cu: need, why = max(need, 1), "trans->valu"
                    if c.get("perm") and vd & cu: need, why = 2, "valu->permlane"
                    if c.get("dpp") and vd & cu: need, why = 2, "valu->dpp"
                    if c.get("rdlane") and vd & cu: need, why = max(need, 1), "valu->readlane"
                    if sd & cu: need, why = max(need, 2), "valu sgpr->valu"
                    if c.get("rdlane") and sd & cu: need, why = 4, "valu sgpr->lane sel"
                if c["kind"] == "vmem" and sd & cu: need, why = 5, "valu sgpr->vmem"
                if ("exec", 0) in pd and c["kind"] == "mfma": need, why = 4, "exec->mfma"
                if ("exec", 0) in pd and c["kind"] == "valu" and (c.get("dpp")): need, why = 5, "exec->dpp"
                if ("exec", 0) in pd and c["kind"] == "valu" and (c.get("rdlane") or c.get("perm")): need, why = 4, "exec->lane"
            if p["kind"] == "mfma":
                big = p["passes"] == 8
                if c["kind"] == "mfma":
                    if vd & set(c["a"] + c["b"]): need, why = (12 if big else 8), "mfma D->mfma AB"
                    cc = set(c["c"])
                    if vd & cc and not (cc == vd and c["passes"] == p["passes"]): need, why = max(need, 10 if big else 6), "mfma D->mfma C overlap"
                    if vd & cd and not (cd == vd): need, why = max(need, 12 if big else 8), "mfma WAW partial"
                elif c["kind"] in ("valu", "vmem", "ds"):
                    if vd & (cu | cd): need, why = (12 if big else 8), "mfma D->valu/mem"
                    if c["kind"] == "valu" and set(p["c"]) & cd: need, why = max(need, 7 if big else 3), "mfma C WAR"
            if p["kind"] == "salu" and ("m0", 0) in pd and c.get("dma"): need, why = 1, "m0->dma"
            if p["kind"] == "vmem" and p.get("store") and p.get("wide") and set(p["data"]) & cd and c["kind"] in ("valu", "mfma", "ds", "vmem"):
                need, why = 2, "store data WAR"
            if need > dist:
                probs.append(f"{name}: HAZARD {why} need {need} have {dist}: [{p['text']}] -> [{c['text']}]")
            dist += ws_of(p)
            if dist >= 20: break
    vm = []
    lg = []
    for i, c in enumerate(P):
        if c["op"] == "s_waitcnt":
            m = re.search(r"vmcnt\((\d+)\)", c["text"])
            if m:
                n = int(m.group(1)); vm = vm[len(vm) - n:] if n < len(vm) else vm
                if n == 0: vm = []
            m = re.search(r"lgkmcnt\((\d+)\)", c["text"])
            if m:
                n = int(m.group(1))
                if any(x[1] == "smem" for x in lg) and n > 0: pass
                else:
                    lg = lg[len(lg) - n:] if n < len(lg) else lg
                    if n == 0: lg = []
            continue
        touched = set(c["uses"]) | set(c["defs"])
        for q, nm in ((vm, "vmcnt"), (lg, "lgkmcnt")):
            for (dd, kind, txt) in q:
                if dd & touched:
                    probs.append(f"{name}: MISSING {nm} wait: [{txt}] -> [{c['text']}]")
        if c["kind"] == "vmem":
            vm.append((set(c["defs"]), "vmem", c["text"]))
            if len(vm) > 63: probs.append(f"{name}: vmcnt overflow {len(vm)} at [{c['text']}]")
        elif c["kind"] == "ds": lg.append((set(c["defs"]), "ds", c["text"]))
        elif c["kind"] == "smem": lg.append((set(c["defs"]), "smem", c["text"]))
    return probs

def linearise(L, trips=2):
    out = []
    end = next(i for i, l in enumerate(L) if l.startswith("s_endpgm"))
    labpos = {l[:-1]: i for i, l in enumerate(L) if l.endswith(":")}
    i = 0
    seen = {}
    while i <= end:
        l = L[i]
        out.append(l)
        m = re.match(r"s_cbranch_\w+\s+(\S+)", l)
        if m and labpos.get(m.group(1), 1 << 30) < i:
            seen[i] = seen.get(i, 1)
            if seen[i] < trips:
                seen[i] += 1
                i = labpos[m.group(1)]
                continue
        i += 1
    return out

HEADER = open("adaLN_cond__mha_block_cached__glu_gated_swiglu__prompt.s.ref").read().split("; Override launch")[0]

def build_file(kernels, launches=None):
    launches = launches or kernels
    s = HEADER
    for k in launches: s += k.launch() + "\n"
    s += '.amdgcn_target "amdgcn-amd-amdhsa--gfx950"\n.text\n'
    for k in kernels: s += k.text() + "\n"
    s += '.section .rodata,"a"\n'
    for k in kernels: s += ".p2align 6\n" + k.desc() + "\n"
    return s
```

```python
from fw import K, R
from layout import *

BIAS = 80.0
THR = 40.0

def cost(op):
    return 8 if op.startswith(("v_exp", "v_rcp")) else 4

def pour(gaps, cap, ops):
    tot_cap = sum(cap[g] for g in gaps); tot = sum(cost(o) for o in ops)
    out = {g: [] for g in gaps}
    gi = 0; cum_cap = cap[gaps[0]]; acc = 0; used = 0
    for o in ops:
        c = cost(o)
        while gi < len(gaps) - 1 and (used + c > cap[gaps[gi]] or acc + c / 2 > cum_cap * tot / tot_cap):
            gi += 1; cum_cap += cap[gaps[gi]]; used = 0
        out[gaps[gi]].append(o); used += c; acc += c
    return out

def k_attn(bias=BIAS, thr=THR):
    k = K("attn_kernel", (256, 1, 1), 256, lds=163840, vgpr=256, agpr=256, sgpr=64)
    e = k.e
    done = k.lab("done")
    S = lambda b, qh: 64 + 32 * b + 16 * qh
    P = lambda b, qh: 128 + 16 * b + 8 * qh
    NM = lambda qh: 160 + 16 * qh
    Q = lambda qh, ks: 192 + 32 * qh + 4 * ks
    O = lambda qh, db: 64 * qh + 16 * db
    KF = lambda ks: 128 + 4 * ks
    VF = lambda ks2, db: 160 + 16 * ks2 + 4 * db
    KA_ = lambda ks: 8 + ks
    VA = lambda db: 16 + db
    Lr = lambda qh: 20 + qh
    LT = lambda qh: 22 + qh
    TMP = lambda qh, j: 32 + 8 * qh + (j % 4) * 2
    kslot = lambda j: ((j % 4) >> 1) * 32768 + (j & 1) * 8192
    vslot = lambda j: kslot(j) + 16384
    mf = lambda d, a, b, c: f"v_mfma_f32_32x32x16_bf16 {d}, {a}, {b}, {c}"

    e(f"s_cmp_ge_u32 s2, 256\ns_cbranch_scc1 {done}")
    e(f"s_load_dwordx4 s[4:7], s[0:1], {KA['k']}")
    e(f"s_load_dwordx2 s[8:9], s[0:1], {KA['wq']}")
    e(f"s_load_dwordx2 s[10:11], s[0:1], {KA['ws']}")
    e("v_and_b32 v1, 63, v0\nv_lshrrev_b32 v2, 6, v0\ns_nop 0\nv_readfirstlane_b32 s40, v2")
    e("s_and_b32 s41, s2, 7\ns_lshl_b32 s41, s41, 2\ns_bfe_u32 s42, s2, 0x20003\ns_add_u32 s41, s41, s42\ns_lshr_b32 s42, s2, 5")
    e("v_lshlrev_b32 v3, 4, v1")
    e("s_lshl_b32 s43, s40, 11")
    e("v_lshrrev_b32 v26, 4, v1\nv_and_b32 v27, 15, v1")
    e("s_and_b32 s44, s40, 1\ns_lshl_b32 s44, s44, 3")
    e("v_add_u32 v28, s44, v26\nv_xor_b32 v28, v28, v27\nv_lshlrev_b32 v28, 4, v28\nv_lshl_add_u32 v4, v26, 8, v28\nv_xor_b32 v5, 64, v4")
    e("v_lshlrev_b32 v28, 2, v26\nv_xor_b32 v28, v28, v27\nv_lshlrev_b32 v28, 4, v28\nv_lshl_add_u32 v6, v26, 8, v28\nv_lshl_add_u32 v7, v26, 13, v28")
    e("v_and_b32 v26, 0x13, v1\nv_bfe_u32 v27, v1, 2, 1\nv_lshl_or_b32 v26, v27, 3, v26\nv_bfe_u32 v27, v1, 3, 1\nv_lshl_or_b32 v26, v27, 2, v26")
    e("v_and_b32 v27, 15, v26\nv_lshrrev_b32 v28, 5, v1\nv_xor_b32 v27, v27, v28")
    e("v_lshlrev_b32 v27, 4, v27\nv_lshl_add_u32 v8, v26, 8, v27")
    for ks in range(1, 8): e(f"v_xor_b32 v{KA_(ks)}, {ks*32}, v8")
    e("v_bfe_u32 v26, v1, 2, 2\nv_and_b32 v27, 3, v1\nv_lshrrev_b32 v28, 1, v27\nv_and_b32 v27, 1, v27\nv_lshl_or_b32 v27, v27, 1, v28")
    e("v_lshrrev_b32 v28, 5, v1\nv_lshl_add_u32 v28, v28, 3, v26\nv_lshlrev_b32 v16, 8, v28\nv_lshl_add_u32 v16, v26, 6, v16")
    e("v_bfe_u32 v28, v1, 4, 1\nv_lshl_add_u32 v16, v28, 5, v16\nv_lshl_add_u32 v16, v27, 3, v16")
    for db in range(1, 4): e(f"v_xor_b32 v{VA(db)}, {db*64}, v16")
    for db in range(4): e(f"v_add_u32 v{48+db}, 0x8000, v{VA(db)}")
    e("s_waitcnt lgkmcnt(0)")
    e("s_lshl_b32 s45, s41, 19")
    e("s_add_u32 s12, s4, s45\ns_addc_u32 s13, s5, 0\ns_and_b32 s13, s13, 0xffff\ns_mov_b32 s14, 0x80000\ns_mov_b32 s15, 0x20000")
    e("s_add_u32 s16, s6, s45\ns_addc_u32 s17, s7, 0\ns_and_b32 s17, s17, 0xffff\ns_mov_b32 s18, 0x80000\ns_mov_b32 s19, 0x20000")
    k.srd(20, 8, 9, 512 * 8192)
    k.srd(24, 10, 11, 0x200000, off=H1F)
    k.srd(28, 10, 11, 0x1000000, off=OF)
    e("s_lshl_b32 s46, s42, 3\ns_lshl_b32 s47, s40, 1\ns_add_u32 s46, s46, s47")
    e("s_lshl_b32 s48, s46, 15\ns_add_u32 s49, s48, 0x8000")
    e("s_lshl_b32 s50, s40, 18\ns_lshl_b32 s51, s41, 8\ns_add_u32 s50, s50, s51")
    e("s_lshl_b32 s51, s40, 13\ns_add_u32 s51, s51, 0x8000")
    e("s_mov_b32 s52, s43\ns_mov_b32 s53, s43")
    e(f"s_mov_b32 s54, {f32(2.0**thr)}")
    vq = []
    def wq_dma(c, i):
        r = [f"s_add_u32 m0, s51, {c*32768+i*1024}", f"s_add_u32 s55, s50, {(128*c+4*i)*8192}",
             "buffer_load_dwordx4 v7, s[20:23], s55 offen lds"]
        vq.append(("wq", c)); return r
    def h1reg(ks, qh): return (8 * ks + 4 * qh) % 192
    def h1_load(ks, qh):
        r = [f"buffer_load_dwordx4 {R('a', h1reg(ks, qh), 4)}, v3, s[24:27], s{48+qh} offen offset:{(ks%4)*1024}"]
        if ks % 4 == 3 and qh == 1: r.append("s_add_u32 s48, s48, 4096\ns_add_u32 s49, s49, 4096")
        vq.append(("h1", ks // 8)); return r
    def k_dma(j):
        vq.append(("k", j)); vq.append(("k", j))
        return [f"s_add_u32 m0, s43, {kslot(j)}", "s_nop 0", "buffer_load_dwordx4 v4, s[12:15], s52 offen lds",
                "buffer_load_dwordx4 v5, s[12:15], s52 offen offset:1024 lds", "s_add_u32 s52, s52, 8192"]
    def v_dma(j):
        vq.append(("v", j)); vq.append(("v", j))
        return [f"s_add_u32 m0, s43, {vslot(j)}", "s_nop 0", "buffer_load_dwordx4 v6, s[16:19], s53 offen lds",
                "buffer_load_dwordx4 v6, s[16:19], s53 offen offset:1024 lds", "s_add_u32 s53, s53, 8192"]
    def chunk_loads(c):
        r = []
        for i in range(8):
            r += wq_dma(c, i); r += h1_load(8*c+i, 0); r += h1_load(8*c+i, 1)
        return r
    def wait_for(tags):
        last = max(i for i, t in enumerate(vq) if t in tags)
        return f"s_waitcnt vmcnt({len(vq)-1-last})"
    for l in chunk_loads(0): e(l)
    for l in k_dma(0) + k_dma(1) + v_dma(0): e(l)
    for l in chunk_loads(1): e(l)
    WF = lambda ks, db: 192 + 16 * (ks % 2) + 4 * db
    QA = lambda qh, db: 64 + 64 * qh + 16 * db
    def wreads(ks):
        return [f"ds_read_b64_tr_b16 {R('a', WF(ks, db)+2*i, 2)}, v{48+db} offset:{((16*(ks%8))+4*i)*256}" for db in range(4) for i in range(2)]
    for c in range(4):
        e(wait_for({("wq", c), ("h1", c)}))
        e("s_barrier")
        if c:
            for db in range(4): e(f"v_add_u32 v{48+db}, 0x8000, v{48+db}")
        for l in wreads(8*c): e(l)
        extra = []
        if c == 0: extra = chunk_loads(2)
        if c == 1: extra = chunk_loads(3)
        if c == 2: extra = k_dma(2) + v_dma(1) + k_dma(3) + v_dma(2)
        units = []; cur = []
        for l in extra:
            cur.append(l)
            if l.startswith("buffer_load") : units.append(cur); cur = []
        if cur: units[-1] += cur
        for ks in range(8*c, 8*c+8):
            nxt = wreads(ks + 1) if (ks + 1) % 8 else []
            e("s_waitcnt lgkmcnt(0)")
            n = 0
            for db in range(4):
                for qh in range(2):
                    acc = R('v', QA(qh, db), 16)
                    e(mf(acc, R('a', WF(ks, db), 4), R('a', h1reg(ks, qh), 4), acc if ks else "0"))
                    if n < len(nxt): e(nxt[n])
                    if units and n % 2 == 1:
                        for l in units.pop(0): e(l)
                    n += 1
        assert not units
    def kreads(j): return [f"ds_read_b128 {R('a', KF(ks), 4)}, v{KA_(ks)} offset:{kslot(j)}" for ks in range(8)]
    def vreads(j): return [f"ds_read_b64_tr_b16 {R('a', VF(ks2, db)+2*i, 2)}, v{VA(db)} offset:{vslot(j)+(16*ks2+4*i)*256}"
                           for ks2 in range(2) for db in range(4) for i in range(2)]
    for l in kreads(0): e(l)
    e("s_nop 7")
    for qh in range(2):
        for db in range(4):
            for j in range(8):
                e(f"v_cvt_pk_bf16_f32 v{Q(qh, 2*db)+j}, v{QA(qh, db)+2*j}, v{QA(qh, db)+2*j+1}")
    e("s_waitcnt lgkmcnt(0)")
    kr = kreads(1)
    for qh in range(2):
        for ks in range(8):
            s = R('v', S(0, qh), 16)
            e(mf(s, R('a', KF(ks), 4), R('v', Q(qh, ks), 4), s if ks else "0"))
            if qh == 1 and ks > 0: e(kr[ks-1])
    e(kr[7])
    def rowmax(b, qh, dst, tmp):
        s = S(b, qh); r = []
        r.append(f"v_max3_f32 v{dst}, v{s}, v{s+1}, v{s+2}")
        r.append(f"v_max3_f32 v{tmp}, v{s+3}, v{s+4}, v{s+5}")
        for j in range(6, 14, 4):
            r.append(f"v_max3_f32 v{dst}, v{dst}, v{s+j}, v{s+j+1}")
            r.append(f"v_max3_f32 v{tmp}, v{tmp}, v{s+j+2}, v{s+j+3}")
        r.append(f"v_max3_f32 v{dst}, v{dst}, v{s+14}, v{s+15}")
        r.append(f"v_max_f32 v{dst}, v{dst}, v{tmp}")
        r.append(f"v_mov_b32 v{tmp}, v{dst}")
        r.append("s_nop 1")
        r.append(f"v_permlane32_swap_b32 v{dst}, v{tmp}")
        r.append(f"v_max_f32 v{dst}, v{dst}, v{tmp}")
        return r
    def softmax(b, qh):
        seq = []; pend = None
        for j in range(8):
            r = S(b, qh) + 2 * j; t = TMP(qh, j)
            seq.append(f"v_exp_f32 v{t}, v{r}")
            if pend: seq += pend[:1]
            seq.append(f"v_exp_f32 v{t+1}, v{r+1}")
            if pend: seq += pend[1:]
            if j == 0: pend = [f"v_add_f32 v{LT(qh)}, v{t}, v{t+1}"]
            else: pend = [f"v_add_f32 v{LT(qh)}, v{LT(qh)}, v{t}", f"v_add_f32 v{LT(qh)}, v{LT(qh)}, v{t+1}"]
            pend.append(f"v_cvt_pk_bf16_f32 v{P(b, qh)+j}, v{t}, v{t+1}")
        return seq + [pend[0]] + pend[1:]
    e("s_nop 3")
    for qh in range(2):
        for l in rowmax(0, qh, 26, 27): e(l)
        e(f"v_sub_f32 v26, {f32(-bias)}, v26")
        for j in range(16): e(f"v_mov_b32 v{NM(qh)+j}, v26")
        for j in range(16): e(f"v_add_f32 v{S(0, qh)+j}, v{S(0, qh)+j}, v26")
        e(f"v_mov_b32 v{Lr(qh)}, 0")
    for l in softmax(0, 0): e(l)
    e(wait_for({("k", 2), ("v", 0)}) + " lgkmcnt(0)")
    e("s_barrier")
    for l in k_dma(4): e(l)

    slow_blocks = []
    def iteration(t, first=False, tail=None):
        cur, nxt = t % 2, 1 - t % 2
        has_qk = tail != 63
        mfs = []
        if has_qk:
            for qh in range(2):
                for ks in range(8):
                    s = R('v', S(nxt, qh), 16)
                    mfs.append(mf(s, R('a', KF(ks), 4), R('v', Q(qh, ks), 4), s if ks else R('v', NM(qh), 16)))
        else:
            mfs += [None] * 16
        for qh in range(2):
            for ks2 in range(2):
                for db in range(4):
                    o = R('a', O(qh, db), 16)
                    mfs.append(mf(o, R('a', VF(ks2, db), 4), R('v', P(cur, qh) + 4 * ks2, 4), "0" if (first and ks2 == 0) else o))
        pre = [[] for _ in range(32)]; post = [[] for _ in range(32)]
        vr = vreads(t)
        pre[0] += vr[0:2]; pre[1] += vr[2:4]
        for g in range(2, 14): pre[g].append(vr[g + 2])
        pre[15].append("s_waitcnt lgkmcnt(0)")
        if tail is None or tail < 62:
            krd = kreads(t + 2)
            for g, l in zip((16, 19, 21, 22, 24, 26, 27, 28), krd): pre[g].append(l)
        if tail is None:
            pre[17].append(f"s_add_u32 m0, s43, {kslot(t+5)}")
            pre[18].append("buffer_load_dwordx4 v4, s[12:15], s52 offen lds")
            pre[20].append("buffer_load_dwordx4 v5, s[12:15], s52 offen offset:1024 lds")
            pre[22].insert(0, f"s_add_u32 m0, s43, {vslot(t+3)}")
            pre[23].append("buffer_load_dwordx4 v6, s[16:19], s53 offen lds")
            pre[25].append("buffer_load_dwordx4 v6, s[16:19], s53 offen offset:1024 lds")
            pre[21].append("s_add_u32 s52, s52, 8192")
            pre[26].append("s_add_u32 s53, s53, 8192")
            pre[30].append("s_waitcnt vmcnt(8) lgkmcnt(0)")
        elif tail == 61: pre[30].append("s_waitcnt vmcnt(4) lgkmcnt(0)")
        elif tail == 62: pre[30].append("s_waitcnt vmcnt(0) lgkmcnt(0)")
        if tail != 63: pre[31].append("s_barrier")
        cap = [24 - 4 * len(pre[g]) for g in range(32)]
        for g, ops in pour(list(range(0, 15)), cap, softmax(cur, 1)).items(): post[g] += ops
        if not first:
            sl = k.lab("slow"); ret = k.lab("ret")
            post[15] += [f"v_max_f32 v26, v{LT(0)}, v{LT(1)}", "v_cmp_nge_f32 vcc, s54, v26", f"s_cbranch_vccnz {sl}", ret + ":"]
            slow_blocks.append((sl, ret, cur, has_qk))
        ops = [f"v_add_f32 v{Lr(0)}, v{Lr(0)}, v{LT(0)}", f"v_add_f32 v{Lr(1)}, v{Lr(1)}, v{LT(1)}"]
        if has_qk: ops += softmax(nxt, 0)
        for g, o in pour(list(range(16, 31)), cap, ops).items(): post[g] += o
        for g in range(32):
            if mfs[g]: e(mfs[g])
            for l in pre[g] + post[g]: e(l)
    iteration(0, first=True)
    e("s_mov_b32 s56, 15")
    loop = k.lab("loop")
    k.label(loop)
    for t in range(1, 5): iteration(t)
    e(f"s_sub_u32 s56, s56, 1\ns_cmp_lg_u32 s56, 0\ns_cbranch_scc1 {loop}")
    for t in (61, 62, 63): iteration(t, tail=t)
    for qh in range(2):
        e(f"v_mov_b32 v26, v{Lr(qh)}\ns_nop 1\nv_permlane32_swap_b32 v{Lr(qh)}, v26\nv_add_f32 v26, v26, v{Lr(qh)}\nv_rcp_f32 v{Lr(qh)}, v26")
    e("s_lshl_b32 s48, s46, 18\ns_lshl_b32 s49, s41, 13\ns_add_u32 s48, s48, s49\ns_add_u32 s49, s48, 0x40000")
    e("v_add_u32 v27, 4096, v3")
    e("s_nop 7")
    for qh in range(2):
        for db in range(4):
            b = 64 + 32 * ((4*qh+db) % 4)
            for j in range(16): e(f"v_accvgpr_read_b32 v{b+j}, a{O(qh, db)+j}")
            for j in range(16): e(f"v_mul_f32 v{b+j}, v{b+j}, v{Lr(qh)}")
            for j in range(8): e(f"v_cvt_pk_bf16_f32 v{b+16+j}, v{b+2*j}, v{b+2*j+1}")
            for h2 in range(2):
                f = 2 * db + h2
                e(f"buffer_store_dwordx4 {R('v', b+16+4*h2, 4)}, v{3 if f < 4 else 27}, s[28:31], s{48+qh} offen offset:{(f%4)*1024}")
    k.label(done)
    e("s_endpgm")
    for sl, ret, cur, has_qk in slow_blocks:
        nxt = 1 - cur
        k.label(sl)
        e("s_nop 15")
        for qh in range(2):
            for l in rowmax(cur, qh, 26, 27): e(l)
            e(f"v_add_f32 v26, {f32(bias)}, v26\nv_max_f32 v26, 0, v26")
            e("v_sub_f32 v27, 0, v26\nv_exp_f32 v27, v27")
            for j in range(16): e(f"v_sub_f32 v{NM(qh)+j}, v{NM(qh)+j}, v26")
            if has_qk:
                for j in range(16): e(f"v_sub_f32 v{S(nxt, qh)+j}, v{S(nxt, qh)+j}, v26")
            for j in range(16): e(f"v_sub_f32 v{S(cur, qh)+j}, v{S(cur, qh)+j}, v26")
            e(f"v_mul_f32 v{Lr(qh)}, v{Lr(qh)}, v27")
            for l in softmax(cur, qh): e(l)
            for j0 in range(0, 64, 8):
                for j in range(8): e(f"v_accvgpr_read_b32 v{48+j}, a{64*qh+j0+j}")
                for j in range(8): e(f"v_mul_f32 v{48+j}, v{48+j}, v27")
                for j in range(8): e(f"v_accvgpr_write_b32 a{64*qh+j0+j}, v{48+j}")
        e("s_nop 1")
        e(f"s_branch {ret}")
    return k
```

```python
from fw import K, R
from layout import *

def rnd_pairs(e, regs, tmp):
    n = len(regs) // 2
    for j in range(n): e(f"v_cvt_pk_bf16_f32 v{tmp[j]}, v{regs[2*j]}, v{regs[2*j+1]}")
    for j in range(n): e(f"v_lshlrev_b32 v{regs[2*j]}, 16, v{tmp[j]}\nv_and_b32 v{regs[2*j+1]}, 0xffff0000, v{tmp[j]}")

def k_gemm(mode, D=12):
    cfg = dict(
        A=dict(name="gemma_kernel", K=4096, act=OF, wptr=("wo",), wstride=1024, nt=8),
        B=dict(name="gemmb_kernel", K=512, act=H2F, wptr=("w1", "w3"), wstride=3584, nt=56),
        C=dict(name="gemmc_kernel", K=1792, act=HHF, wptr=("w2",), wstride=1024, nt=8))[mode]
    Kt = cfg["K"]; KS = Kt // 16; KS4 = KS // 4
    D = min(D, KS4); DL = max(D, 8)
    ng = 32 * cfg["nt"]
    k = K(cfg["name"], (ng, 1, 1), 256, lds=4 * DL * 2048, vgpr=64 + 64 + 16 + 8 * D, sgpr=64)
    e = k.e
    ACC = 64; AF = 128; BF = 144
    done = k.lab("done")
    e(f"s_cmp_ge_u32 s2, {ng}\ns_cbranch_scc1 {done}")
    for i, p in enumerate(cfg["wptr"]): e(f"s_load_dwordx2 s[{4+2*i}:{5+2*i}], s[0:1], {KA[p]}")
    e(f"s_load_dwordx2 s[8:9], s[0:1], {KA['ws']}")
    e(f"s_load_dwordx2 s[10:11], s[0:1], {KA['x'] if mode == 'A' else KA['out']}")
    e("v_and_b32 v1, 63, v0\nv_lshrrev_b32 v2, 6, v0\ns_nop 0\nv_readfirstlane_b32 s40, v2")
    e("s_and_b32 s41, s2, 7\ns_lshl_b32 s41, s41, 2\ns_bfe_u32 s42, s2, 0x20003\ns_add_u32 s41, s41, s42\ns_lshr_b32 s42, s2, 5")
    e("v_lshlrev_b32 v3, 4, v1")
    if mode != "B":
        e("v_lshrrev_b32 v4, 3, v1\nv_and_b32 v5, 7, v1\nv_and_b32 v6, 2, v4\nv_lshlrev_b32 v6, 1, v6\nv_xor_b32 v5, v5, v6")
        e("v_lshlrev_b32 v4, 10, v4\nv_lshl_add_u32 v4, v5, 4, v4")
    else:
        e("v_lshrrev_b32 v4, 2, v1\nv_and_b32 v5, 3, v1\ns_movk_i32 s43, 3584\nv_mul_lo_u32 v4, v4, s43")
        e("v_xor_b32 v6, 2, v5\nv_lshl_add_u32 v7, v6, 4, v4\nv_lshl_add_u32 v4, v5, 4, v4")
    e("v_bfe_u32 v10, v1, 2, 2")
    e("v_and_b32 v11, 3, v1")
    e("v_lshrrev_b32 v12, 1, v11\nv_and_b32 v13, 1, v11\nv_lshl_or_b32 v11, v13, 1, v12")
    e("v_lshrrev_b32 v12, 5, v1")
    e("v_bfe_u32 v13, v1, 4, 1")
    e("v_lshl_add_u32 v12, v12, 3, v10")
    e(f"s_mul_i32 s44, s40, {DL*2048}")
    if mode != "B":
        e("v_lshlrev_b32 v8, 7, v12\nv_lshl_add_u32 v8, v13, 5, v8\nv_lshl_add_u32 v8, v11, 3, v8")
        e("v_lshrrev_b32 v14, 1, v10\nv_lshl_add_u32 v8, v14, 6, v8\nv_add_u32 v8, s44, v8\nv_xor_b32 v9, 64, v8")
    else:
        e("v_lshlrev_b32 v8, 6, v12\nv_lshl_add_u32 v8, v13, 10, v8\nv_lshl_add_u32 v8, v11, 3, v8")
        e("v_lshl_add_u32 v8, v13, 5, v8\nv_add_u32 v8, s44, v8\nv_xor_b32 v9, 32, v8")
    e("s_waitcnt lgkmcnt(0)")
    wbytes = Kt * cfg["wstride"]
    k.srd(12, 4, 5, wbytes)
    if mode == "B": k.srd(16, 6, 7, wbytes)
    k.srd(20, 8, 9, 64 * KS * 1024, off=cfg["act"])
    e(f"s_mul_i32 s45, s41, {2*KS*1024}\ns_mul_i32 s47, s40, {KS4*1024}\ns_add_u32 s45, s45, s47\ns_add_u32 s46, s45, {KS*1024}")
    e(f"s_mul_i32 s47, s40, {KS4*16*cfg['wstride']}\ns_lshl_b32 s48, s42, {7 if mode != 'B' else 6}\ns_add_u32 s47, s47, s48")
    e("s_and_b32 s50, s40, 1\ns_lshr_b32 s51, s40, 1")
    e("s_lshl_b32 s52, s41, 1\ns_add_u32 s52, s52, s51")
    npre = 0
    if mode in "AC":
        k.srd(24, 8, 9, 3072 * 4, off=MODF)
        k.srd(28, 8, 9, 0x200000, off=X1F)
        k.srd(32, 10, 11, 0x200000)
        ch = 2 if mode == "A" else 5
        e("v_lshrrev_b32 v15, 5, v1\nv_lshlrev_b32 v15, 5, v15")
        e(f"s_lshl_b32 s53, s42, 8\ns_lshl_b32 s54, s50, 7\ns_add_u32 s53, s53, s54\ns_add_u32 s53, s53, {ch*2048}")
        for j in range(4):
            e(f"buffer_load_dwordx4 v[{16+4*j}:{19+4*j}], v15, s[24:27], s53 offen offset:{(j>>1)*64+(j&1)*16}")
        e("v_and_b32 v40, 31, v1\nv_lshlrev_b32 v40, 10, v40\nv_lshrrev_b32 v41, 5, v1\nv_lshl_add_u32 v40, v41, 4, v40")
        e("s_lshl_b32 s55, s52, 15\ns_lshl_b32 s56, s42, 7\ns_add_u32 s55, s55, s56\ns_lshl_b32 s56, s50, 6\ns_add_u32 s55, s55, s56")
        e("s_lshl_b32 s56, s52, 15\ns_lshl_b32 s57, s42, 12\ns_add_u32 s56, s56, s57\ns_lshl_b32 s57, s50, 11\ns_add_u32 s56, s56, s57")
        if mode == "A":
            e("buffer_load_dwordx4 v[32:35], v40, s[32:35], s55 offen\nbuffer_load_dwordx4 v[36:39], v40, s[32:35], s55 offen offset:32")
        else:
            e("buffer_load_dwordx4 v[32:35], v3, s[28:31], s56 offen\nbuffer_load_dwordx4 v[36:39], v3, s[28:31], s56 offen offset:1024")
        npre = 6
    else:
        k.srd(28, 8, 9, 64 * 112 * 1024, off=HHF)
        e(f"s_mul_i32 s56, s52, {112*1024}\ns_lshl_b32 s57, s42, 11\ns_add_u32 s56, s56, s57\ns_lshl_b32 s57, s50, 10\ns_add_u32 s56, s56, s57")
    issued = [0]
    def loads(s):
        slot = s % D
        e(f"s_add_u32 m0, s44, {slot*2048}")
        if mode != "B":
            e(f"buffer_load_dwordx4 {R('v', BF+8*slot, 4)}, v3, s[20:23], s45 offen offset:{(s%4)*1024}")
            e(f"buffer_load_dwordx4 v4, s[12:15], s47 offen lds")
            e(f"s_add_u32 m0, s44, {slot*2048+1024}\ns_add_u32 s48, s47, 8192")
            e(f"buffer_load_dwordx4 {R('v', BF+8*slot+4, 4)}, v3, s[20:23], s46 offen offset:{(s%4)*1024}")
            e(f"buffer_load_dwordx4 v4, s[12:15], s48 offen lds")
        else:
            e(f"buffer_load_dwordx4 {R('v', BF+8*slot, 4)}, v3, s[20:23], s45 offen offset:{(s%4)*1024}")
            e(f"buffer_load_dwordx4 v4, s[12:15], s47 offen lds")
            e(f"s_add_u32 m0, s44, {slot*2048+1024}")
            e(f"buffer_load_dwordx4 {R('v', BF+8*slot+4, 4)}, v3, s[20:23], s46 offen offset:{(s%4)*1024}")
            e(f"buffer_load_dwordx4 v7, s[16:19], s47 offen lds")
        e(f"s_add_u32 s47, s47, {16*cfg['wstride']}")
        if s % 4 == 3: e("s_add_u32 s45, s45, 4096\ns_add_u32 s46, s46, 4096")
        issued[0] = s + 1
    def areads(s):
        slot = s % D; b = AF + 8 * (s % 2)
        step = 512 if mode != "B" else 256
        for nb in range(2):
            for i in range(2):
                e(f"ds_read_b64_tr_b16 {R('v', b+4*nb+2*i, 2)}, v{8+nb} offset:{slot*2048+i*step}")
    for s in range(D): loads(s)
    e(f"s_waitcnt vmcnt({4*(issued[0]-1)})")
    areads(0)
    for s in range(KS4):
        if s + 1 < KS4:
            e(f"s_waitcnt vmcnt({4*(issued[0]-(s+2))})")
            areads(s + 1)
            e("s_waitcnt lgkmcnt(4)")
        else:
            e("s_waitcnt lgkmcnt(0)")
        slot = s % D; b = AF + 8 * (s % 2)
        for nb in range(2):
            for qb in range(2):
                acc = R('v', ACC + 16 * (2*qb+nb), 16)
                e(f"v_mfma_f32_32x32x16_bf16 {acc}, {R('v', b+4*nb, 4)}, {R('v', BF+8*slot+4*qb, 4)}, {acc if s else 0}")
        if s + D < KS4: loads(s + D)
    e("v_add_u32 v5, s44, v3")
    e("s_nop 7\ns_nop 3")
    for j in range(16): e(f"ds_write_b128 v5, {R('v', ACC+4*j, 4)} offset:{j*1024}")
    e(f"s_lshl_b32 s58, s40, 12\nv_add_u32 v5, s58, v3\nv_add_u32 v6, {2*DL*2048}, v5")
    e("s_waitcnt lgkmcnt(0)\ns_barrier")
    for sw in range(4):
        for j in range(4): e(f"ds_read_b128 {R('v', ACC+16*sw+4*j, 4)}, v{5+(sw>>1)} offset:{(sw&1)*DL*2048+j*1024}")
    e("s_waitcnt lgkmcnt(8)")
    for j in range(16): e(f"v_add_f32 v{ACC+j}, v{ACC+j}, v{ACC+16+j}")
    e("s_waitcnt lgkmcnt(0)")
    for j in range(16): e(f"v_add_f32 v{ACC+32+j}, v{ACC+32+j}, v{ACC+48+j}")
    for j in range(16): e(f"v_add_f32 v{ACC+j}, v{ACC+j}, v{ACC+32+j}")
    F = list(range(ACC, ACC + 16)); T = list(range(ACC + 16, ACC + 24))
    rnd_pairs(e, F, T)
    if mode in "AC":
        for j in range(16): e(f"v_mul_f32 v{F[j]}, v{16+j}, v{F[j]}")
        rnd_pairs(e, F, T)
        for j in range(8):
            e(f"v_lshlrev_b32 v{ACC+32+2*j}, 16, v{32+j}\nv_and_b32 v{ACC+33+2*j}, 0xffff0000, v{32+j}")
        for j in range(16): e(f"v_add_f32 v{F[j]}, v{F[j]}, v{ACC+32+j}")
        for j in range(8): e(f"v_cvt_pk_bf16_f32 v{T[j]}, v{F[2*j]}, v{F[2*j+1]}")
        if mode == "A":
            e(f"buffer_store_dwordx4 {R('v', T[0], 4)}, v3, s[28:31], s56 offen\nbuffer_store_dwordx4 {R('v', T[4], 4)}, v3, s[28:31], s56 offen offset:1024")
        else:
            e(f"buffer_store_dwordx4 {R('v', T[0], 4)}, v40, s[32:35], s55 offen\nbuffer_store_dwordx4 {R('v', T[4], 4)}, v40, s[32:35], s55 offen offset:32")
    else:
        G = F[:8]; U = F[8:]; X = list(range(ACC + 32, ACC + 40))
        for j in range(8): e(f"v_mul_f32 v{X[j]}, {f32(-LOG2E)}, v{G[j]}")
        for j in range(8): e(f"v_exp_f32 v{X[j]}, v{X[j]}")
        for j in range(8): e(f"v_add_f32 v{X[j]}, 1.0, v{X[j]}")
        for j in range(8): e(f"v_rcp_f32 v{X[j]}, v{X[j]}")
        for j in range(8): e(f"v_mul_f32 v{G[j]}, v{G[j]}, v{X[j]}")
        rnd_pairs(e, G, T[:4])
        for j in range(8): e(f"v_mul_f32 v{G[j]}, v{G[j]}, v{U[j]}")
        for j in range(4): e(f"v_cvt_pk_bf16_f32 v{T[j]}, v{G[2*j]}, v{G[2*j+1]}")
        e(f"buffer_store_dwordx4 {R('v', T[0], 4)}, v3, s[28:31], s56 offen")
    k.label(done)
    e("s_endpgm")
    return k
```

```python
from fw import K, R
from layout import *

def k_modp():
    k = K("modp_kernel", (24, 8, 1), 256, lds=8192, vgpr=48, sgpr=32, wgy=True)
    e = k.e
    done = k.lab("done")
    e(f"s_cmp_ge_u32 s2, 24\ns_cbranch_scc1 {done}")
    e(f"s_load_dwordx2 s[4:5], s[0:1], {KA['c']}")
    e(f"s_load_dwordx2 s[6:7], s[0:1], {KA['wmod']}")
    e(f"s_load_dwordx2 s[8:9], s[0:1], {KA['ws']}")
    e("v_and_b32 v1, 15, v0")
    e("v_lshrrev_b32 v2, 4, v0")
    e("s_mov_b32 s24, 24576")
    e("v_mul_lo_u32 v3, v2, s24")
    e("v_lshl_add_u32 v3, v1, 4, v3")
    e("v_lshlrev_b32 v4, 3, v2")
    e("s_mul_i32 s25, s3, 393216")
    e("s_lshl_b32 s26, s2, 8")
    e("s_add_u32 s25, s25, s26")
    e("s_add_u32 s26, s25, 6144")
    e("s_add_u32 s27, s25, 12288")
    e("s_add_u32 s28, s25, 18432")
    e("s_lshl_b32 s29, s3, 7")
    e("s_waitcnt lgkmcnt(0)")
    k.srd(12, 4, 5, 1024)
    k.srd(16, 6, 7, 512 * 6144)
    k.srd(20, 8, 9, 8 * 3072 * 4, off=MODP)
    e("buffer_load_dwordx2 v[6:7], v4, s[12:15], s29 offen")
    for i in range(4):
        e(f"buffer_load_dwordx4 v[{8+4*i}:{11+4*i}], v3, s[16:19], s{25+i} offen")
    e("s_waitcnt vmcnt(4)")
    e("v_lshlrev_b32 v24, 16, v6\nv_and_b32 v25, 0xffff0000, v6\nv_lshlrev_b32 v26, 16, v7\nv_and_b32 v27, 0xffff0000, v7")
    for i in range(4): e(f"v_mul_f32 v{28+i}, {f32(-LOG2E)}, v{24+i}")
    for i in range(4): e(f"v_exp_f32 v{28+i}, v{28+i}")
    e("s_nop 0")
    for i in range(4): e(f"v_add_f32 v{28+i}, 1.0, v{28+i}")
    for i in range(4): e(f"v_rcp_f32 v{28+i}, v{28+i}")
    e("s_nop 0")
    for i in range(4): e(f"v_mul_f32 v{24+i}, v{24+i}, v{28+i}")
    e("v_cvt_pk_bf16_f32 v28, v24, v25\nv_cvt_pk_bf16_f32 v29, v26, v27")
    e("v_lshlrev_b32 v24, 16, v28\nv_and_b32 v25, 0xffff0000, v28\nv_lshlrev_b32 v26, 16, v29\nv_and_b32 v27, 0xffff0000, v29")
    for i in range(4):
        e(f"s_waitcnt vmcnt({3-i})")
        for j in range(4):
            w = 8 + 4*i + j
            e(f"v_lshlrev_b32 v40, 16, v{w}\nv_and_b32 v41, 0xffff0000, v{w}")
            if i == 0:
                e(f"v_mul_f32 v{32+2*j}, v24, v40\nv_mul_f32 v{33+2*j}, v24, v41")
            else:
                e(f"v_fmac_f32 v{32+2*j}, v{24+i}, v40\nv_fmac_f32 v{33+2*j}, v{24+i}, v41")
    e("v_lshlrev_b32 v5, 9, v2\nv_lshl_add_u32 v5, v1, 5, v5")
    e("ds_write_b128 v5, v[32:35]\nds_write_b128 v5, v[36:39] offset:16")
    e("s_waitcnt lgkmcnt(0)\ns_barrier")
    e("v_cmp_gt_u32 vcc, 128, v0")
    e("s_and_saveexec_b64 s[30:31], vcc")
    e(f"s_cbranch_execz {done}")
    e("v_lshlrev_b32 v5, 2, v0")
    for i in range(16): e(f"ds_read_b32 v{8+i}, v5 offset:{512*i}")
    e("s_waitcnt lgkmcnt(0)")
    for st in (8, 4, 2, 1):
        for i in range(st): e(f"v_add_f32 v{8+i}, v{8+i}, v{8+i+st}")
    e("s_mul_i32 s25, s3, 12288\ns_lshl_b32 s26, s2, 9\ns_add_u32 s25, s25, s26")
    e("buffer_store_dword v8, v5, s[20:23], s25 offen")
    k.label(done)
    e("s_endpgm")
    return k

def k_ln(name, src_frag, src_off, dst_off, ch_shift, ch_scale, scale, with_modf):
    ng = 70 if with_modf else 64
    k = K(name, (ng, 1, 1), 256, lds=8192, vgpr=128, sgpr=40)
    e = k.e
    done = k.lab("done"); modf = k.lab("modf")
    e(f"s_cmp_ge_u32 s2, {ng}\ns_cbranch_scc1 {done}")
    e(f"s_load_dwordx2 s[4:5], s[0:1], {KA['x']}")
    e(f"s_load_dwordx2 s[8:9], s[0:1], {KA['ws']}")
    e("v_and_b32 v1, 63, v0")
    e("v_lshrrev_b32 v2, 6, v0")
    e("v_lshlrev_b32 v3, 3, v0")
    e("s_waitcnt lgkmcnt(0)")
    k.srd(16, 8, 9, 8 * 3072 * 4, off=MODP)
    if with_modf:
        e(f"s_cmp_ge_u32 s2, 64\ns_cbranch_scc1 {modf}")
    if src_frag: k.srd(12, 8, 9, 0x200000, off=src_off)
    else: k.srd(12, 4, 5, 0x200000)
    k.srd(20, 8, 9, 0x200000, off=dst_off)
    e("v_lshlrev_b32 v4, 13, v2\nv_lshl_add_u32 v4, v1, 4, v4")
    e("s_lshl_b32 s24, s2, 15")
    if src_frag:
        for j in range(8):
            if j == 4: e("v_add_u32 v5, 4096, v4")
            e(f"buffer_load_dwordx4 v[{16+4*j}:{19+4*j}], v{4 if j < 4 else 5}, s[12:15], s24 offen offset:{(j%4)*1024}")
    else:
        e("v_and_b32 v5, 31, v1\nv_lshlrev_b32 v5, 10, v5\nv_lshl_add_u32 v5, v2, 8, v5")
        e("v_lshrrev_b32 v6, 5, v1\nv_lshl_add_u32 v5, v6, 4, v5")
        for j in range(8):
            e(f"buffer_load_dwordx4 v[{16+4*j}:{19+4*j}], v5, s[12:15], s24 offen offset:{j*32}")
    for ci, ch in enumerate((ch_scale, ch_shift)):
        for p in range(8):
            e(f"s_mov_b32 s25, {p*12288 + ch*2048}")
            e(f"buffer_load_dwordx2 v[{48+16*ci+2*p}:{49+16*ci+2*p}], v3, s[16:19], s25 offen")
    e("s_waitcnt vmcnt(0)")
    for ci in range(2):
        b = 48 + 16*ci
        for st in (8, 4, 2):
            for i in range(st): e(f"v_add_f32 v{b+i}, v{b+i}, v{b+i+st}")
    e("v_cvt_pk_bf16_f32 v48, v48, v49\nv_cvt_pk_bf16_f32 v64, v64, v65")
    e("v_and_b32 v49, 0xffff0000, v48\nv_lshlrev_b32 v48, 16, v48")
    e("v_and_b32 v51, 0xffff0000, v64\nv_lshlrev_b32 v50, 16, v64")
    e("v_add_f32 v48, 1.0, v48\nv_add_f32 v49, 1.0, v49")
    e("v_cvt_pk_bf16_f32 v48, v48, v49")
    e("v_and_b32 v49, 0xffff0000, v48\nv_lshlrev_b32 v48, 16, v48")
    if scale != 1.0:
        for r in (48, 49, 50, 51): e(f"v_mul_f32 v{r}, {f32(scale)}, v{r}")
    e("ds_write_b64 v3, v[48:49]\nds_write_b64 v3, v[50:51] offset:2048")
    for j in range(32):
        e(f"v_lshlrev_b32 v{64+2*j}, 16, v{16+j}\nv_and_b32 v{65+2*j}, 0xffff0000, v{16+j}")
    def tree(dst, first):
        pass
    e("v_add_f32 v8, v64, v65\nv_add_f32 v9, v66, v67\nv_add_f32 v10, v68, v69\nv_add_f32 v11, v70, v71")
    for j in range(72, 128): e(f"v_add_f32 v{8+(j%4)}, v{8+(j%4)}, v{j}")
    e("v_add_f32 v8, v8, v9\nv_add_f32 v10, v10, v11\nv_add_f32 v8, v8, v10")
    e("v_lshlrev_b32 v7, 2, v0")
    e("ds_write_b32 v7, v8 offset:4096")
    e("v_and_b32 v6, 31, v1\nv_lshlrev_b32 v6, 2, v6")
    e("s_waitcnt lgkmcnt(0)\ns_barrier")
    for i in range(8): e(f"ds_read_b32 v{48+i}, v6 offset:{4096+128*i}")
    e("s_waitcnt lgkmcnt(0)")
    for st in (4, 2, 1):
        for i in range(st): e(f"v_add_f32 v{48+i}, v{48+i}, v{48+i+st}")
    e(f"v_mul_f32 v12, {f32(1/512)}, v48")
    for j in range(64, 128): e(f"v_sub_f32 v{j}, v{j}, v12")
    e("v_mul_f32 v8, v64, v64\nv_mul_f32 v9, v65, v65\nv_mul_f32 v10, v66, v66\nv_mul_f32 v11, v67, v67")
    for j in range(68, 128): e(f"v_fmac_f32 v{8+(j%4)}, v{j}, v{j}")
    e("v_add_f32 v8, v8, v9\nv_add_f32 v10, v10, v11\nv_add_f32 v8, v8, v10")
    e("ds_write_b32 v7, v8 offset:5120")
    e("s_waitcnt lgkmcnt(0)\ns_barrier")
    for i in range(8): e(f"ds_read_b32 v{48+i}, v6 offset:{5120+128*i}")
    e("v_lshrrev_b32 v13, 5, v1\nv_lshlrev_b32 v13, 5, v13\nv_lshl_add_u32 v13, v2, 9, v13")
    e("s_waitcnt lgkmcnt(0)")
    for st in (4, 2, 1):
        for i in range(st): e(f"v_add_f32 v{48+i}, v{48+i}, v{48+i+st}")
    e(f"v_mov_b32 v14, {f32(1e-5)}")
    e(f"v_fmac_f32 v14, {f32(1/512)}, v48")
    e("v_rsq_f32 v14, v14")
    for ks in range(8):
        e(f"ds_read_b128 v[16:19], v13 offset:{ks*64}\nds_read_b128 v[20:23], v13 offset:{ks*64+16}")
        e(f"ds_read_b128 v[24:27], v13 offset:{2048+ks*64}\nds_read_b128 v[28:31], v13 offset:{2048+ks*64+16}")
        b = 64 + 8*ks
        for j in range(8): e(f"v_mul_f32 v{b+j}, v{b+j}, v14")
        e("s_waitcnt lgkmcnt(0)")
        for j in range(8): e(f"v_fma_f32 v{b+j}, v{b+j}, v{16+j}, v{24+j}")
        o = 32 + 4*(ks % 2)
        for j in range(4): e(f"v_cvt_pk_bf16_f32 v{o+j}, v{b+2*j}, v{b+2*j+1}")
        if ks == 4: e("v_add_u32 v4, 4096, v4")
        e(f"buffer_store_dwordx4 v[{o}:{o+3}], v4, s[20:23], s24 offen offset:{(ks%4)*1024}")
    e("s_endpgm")
    if with_modf:
        k.label(modf)
        k.srd(20, 8, 9, 3072 * 4, off=MODF)
        e("s_sub_u32 s26, s2, 64\ns_lshl_b32 s26, s26, 11")
        for p in range(8):
            e(f"s_add_u32 s25, s26, {p*12288}")
            e(f"buffer_load_dwordx2 v[{48+2*p}:{49+2*p}], v3, s[16:19], s25 offen")
        e("s_waitcnt vmcnt(0)")
        for st in (8, 4, 2):
            for i in range(st): e(f"v_add_f32 v{48+i}, v{48+i}, v{48+i+st}")
        e("v_cvt_pk_bf16_f32 v48, v48, v49")
        e("v_and_b32 v49, 0xffff0000, v48\nv_lshlrev_b32 v48, 16, v48")
        e("buffer_store_dwordx2 v[48:49], v3, s[20:23], s26 offen")
    k.label(done)
    e("s_endpgm")
    return k
```

```python
KA = dict(x=0, k=8, v=16, wq=24, wo=32, bx=40, w1=48, w3=56, w2=64, c=72, wmod=80, out=88, dbg=96, ws=104)
MODP = 0x0000000
MODF = 0x0020000
H1F  = 0x0100000
X1F  = 0x0300000
H2F  = 0x0500000
HHF  = 0x0800000
OF   = 0x1000000
W13F = 0x2000000
UBP  = 0x2400000
WS_USED = 0x2800000
import math
LOG2E = 1.4426950408889634
QSCALE = LOG2E / math.sqrt(128.0)
import struct
def f32(x): return "0x%08x" % struct.unpack("<I", struct.pack("<f", x))[0]
```

```python
import sys
from fw import *
from layout import *
from k_small import *
from k_gemm import *
from k_attn import *

def make(**kw):
    ks = [k_modp(),
          k_ln("ln1_kernel", False, 0, H1F, 0, 1, QSCALE, True),
          k_attn(),
          k_gemm("A"),
          k_ln("ln2_kernel", True, X1F, H2F, 3, 4, 1.0, False),
          k_gemm("B"),
          k_gemm("C")]
    return ks

if __name__ == "__main__":
    ks = make()
    bad = 0
    for k in ks:
        pr = check_seq(linearise(k.L), k.name)
        for p in pr[:20]: print(p)
        bad += len(pr)
    out = sys.argv[1] if len(sys.argv) > 1 else "adaLN_cond__mha_block_cached__glu_gated_swiglu__prompt.s"
    open(out, "w").write(build_file(ks))
    print("problems:", bad, "wrote", out)
```

```python
import re

class K:
    def __init__(self, name, grid, block, lds=0, vgpr=128, agpr=0, sgpr=96, wgy=False):
        self.name, self.grid, self.block, self.lds = name, grid, block, lds
        self.vgpr, self.agpr, self.sgpr, self.wgy = vgpr, agpr, sgpr, wgy
        self.L = []
        self.nlab = 0
    def e(self, s):
        for l in s.split("\n"):
            l = l.strip()
            if l: self.L.append(l)
    st_on = False
    def stamp(self):
        if not self.st_on: return
        i = self.nst; self.nst += 1
        self.e(f"s_memtime s[{72+2*i}:{73+2*i}]")
        if i == 0: self.e("s_memrealtime s[96:97]\ns_mov_b32 s100, 0")
        self.e("s_waitcnt lgkmcnt(0)")
    def stamps_on(self, slot):
        self.st_on = True; self.nst = 0; self.slot = slot; self.sgpr = 102
    def stamp_flush(self, wave_sgpr, nw):
        if not self.st_on: return
        e = self.e
        e("s_waitcnt vmcnt(0)")
        self.stamp()
        e("s_memrealtime s[98:99]\ns_load_dwordx2 s[64:65], s[0:1], 104\ns_waitcnt lgkmcnt(0)")
        self.srd(68, 64, 65, 0x40000, off=0x3000000 + self.slot * 0x40000)
        e(f"s_mul_i32 s64, s2, {nw}\ns_add_u32 s64, s64, s{wave_sgpr}\ns_lshl_b32 s64, s64, 6")
        e("s_mov_b64 exec, 1\nv_mov_b32 v0, 0")
        vals = [72 + 2 * i for i in range(self.nst)] + [96, 98, 100] + getattr(self, 'extra', [])
        for i, r in enumerate(vals):
            e(f"v_mov_b32 v1, s{r}\nbuffer_store_dword v1, v0, s[68:71], s64 offen offset:{4*i}\ns_nop 1")
        print(self.name, "stamps:", self.nst, "slot", self.slot)
    def lab(self, base="L"):
        self.nlab += 1
        return f"{self.name}_{base}{self.nlab}"
    def label(self, l): self.L.append(l + ":")
    def srd(self, d, lo, hi, nbytes, off=0):
        if off:
            self.e(f"s_add_u32 s{d}, s{lo}, {off:#x}")
            self.e(f"s_addc_u32 s{d+1}, s{hi}, 0")
            self.e(f"s_and_b32 s{d+1}, s{d+1}, 0xffff")
        else:
            self.e(f"s_mov_b32 s{d}, s{lo}")
            self.e(f"s_and_b32 s{d+1}, s{hi}, 0xffff")
        self.e(f"s_mov_b32 s{d+2}, {nbytes:#x}")
        self.e(f"s_mov_b32 s{d+3}, 0x20000")
    def text(self):
        out = [f".globl {self.name}", ".p2align 8", f".type {self.name},@function", f"{self.name}:"]
        for l in self.L:
            out.append(l if l.endswith(":") or l.startswith(".") else "  " + l)
        return "\n".join(out)
    def desc(self):
        acc = (self.vgpr + 3) // 4 * 4
        nfv = acc + self.agpr if self.agpr else self.vgpr
        s = f""".amdhsa_kernel {self.name}
  .amdhsa_next_free_vgpr {nfv}
  .amdhsa_next_free_sgpr {self.sgpr}
  .amdhsa_accum_offset {acc}
  .amdhsa_group_segment_fixed_size 0
  .amdhsa_kernarg_size 112
  .amdhsa_user_sgpr_count 2
  .amdhsa_user_sgpr_kernarg_segment_ptr 1
  .amdhsa_system_sgpr_workgroup_id_x 1
"""
        if self.wgy: s += "  .amdhsa_system_sgpr_workgroup_id_y 1\n"
        s += ".end_amdhsa_kernel"
        return s
    def launch(self):
        g = self.grid
        return f"; @launch kernel={self.name} grid=({g[0]},{g[1]},{g[2]}) block=({self.block},1,1) lds={self.lds}"

def R(p, lo, n=1):
    return f"{p}{lo}" if n == 1 else f"{p}[{lo}:{lo+n-1}]"

_reg = re.compile(r"\b([vas])(\d+)\b|\b([vas])\[(\d+):(\d+)\]|\b(vcc|exec|m0|scc)\b")
def regs_of(tok):
    out = []
    for m in _reg.finditer(tok):
        if m.group(1): out.append((m.group(1), int(m.group(2))))
        elif m.group(3): out += [(m.group(3), i) for i in range(int(m.group(4)), int(m.group(5)) + 1)]
        else: out.append((m.group(6), 0))
    return out

TRANS = ("v_exp_f32", "v_log_f32", "v_rcp_f32", "v_rsq_f32", "v_sqrt_f32", "v_sin_f32", "v_cos_f32")
def parse(ins):
    ins = ins.split(";")[0].strip()
    parts = ins.split(None, 1)
    op = parts[0]
    args = [a.strip() for a in parts[1].split(",")] if len(parts) > 1 else []
    d = dict(op=op, defs=[], uses=[], kind="other", text=ins)
    A = [regs_of(a) for a in args]
    if op.startswith("v_mfma"):
        d["kind"] = "mfma"; d["defs"] = A[0]; d["a"] = A[1]; d["b"] = A[2]; d["c"] = A[3]
        d["uses"] = A[1] + A[2] + A[3]
        d["passes"] = 8 if "32x32" in op else 4
    elif op.startswith("ds_read") or op.startswith("ds_bpermute") or op.startswith("ds_swizzle") or op.startswith("ds_permute"):
        d["kind"] = "ds"; d["defs"] = A[0]; d["uses"] = sum(A[1:], [])
    elif op.startswith("ds_write") or op.startswith("ds_add") :
        d["kind"] = "ds"; d["uses"] = sum(A, []); d["store"] = True
    elif op.startswith(("buffer_load", "global_load")):
        d["kind"] = "vmem"
        if " lds" in ins or "_lds_" in op:
            d["uses"] = sum(A, []) + [("m0", 0)]; d["dma"] = True
        else:
            d["defs"] = A[0]; d["uses"] = sum(A[1:], [])
    elif op.startswith(("buffer_store", "global_store", "buffer_atomic", "global_atomic")):
        d["kind"] = "vmem"; d["uses"] = sum(A, []); d["store"] = True
        d["data"] = A[0] if op.startswith("buffer") else A[1]
        d["wide"] = ("x3" in op or "x4" in op)
    elif op.startswith(("s_load", "s_buffer_load", "s_memtime", "s_memrealtime")):
        d["kind"] = "smem"; d["defs"] = A[0]; d["uses"] = sum(A[1:], [])
    elif op.startswith("v_"):
        d["kind"] = "valu"
        if op.startswith("v_cmp"):
            d["defs"] = A[0]; d["uses"] = sum(A[1:], [])
            if op.startswith("v_cmpx"): d["defs"] += [("exec", 0)]
        elif op.startswith(("v_permlane32_swap", "v_permlane16_swap", "v_swap")):
            d["defs"] = A[0] + A[1]; d["uses"] = A[0] + A[1]; d["perm"] = True
        elif op.startswith(("v_add_co", "v_sub_co", "v_addc_co", "v_subb_co", "v_subrev_co")):
            d["defs"] = A[0] + A[1]; d["uses"] = sum(A[2:], [])
        else:
            d["defs"] = A[0]; d["uses"] = sum(A[1:], [])
            if op.startswith(("v_fmac", "v_dot2c", "v_pk_fmac", "v_writelane")): d["uses"] += A[0]
            if op.startswith("v_cndmask") and len(A) == 3: d["uses"] += [("vcc", 0)]
        d["trans"] = op.replace("_e32", "").replace("_e64", "") in TRANS
        d["dpp"] = ("_dpp" in op) or ("row_" in ins) or ("quad_perm" in ins) or ("wave_" in ins)
        d["rdlane"] = op.startswith(("v_readlane", "v_readfirstlane"))
    elif op.startswith("s_"):
        d["kind"] = "salu"
        if op in ("s_waitcnt", "s_barrier", "s_nop", "s_endpgm", "s_setprio", "s_branch", "s_sleep") or op.startswith("s_cbranch"):
            d["kind"] = "ctl"
        elif op.startswith("s_cmp") or op.startswith("s_bitcmp"):
            d["uses"] = sum(A, [])
        else:
            d["defs"] = A[0] if A else []; d["uses"] = sum(A[1:], [])
            if "saveexec" in op: d["defs"] += [("exec", 0)]
    return d

def ws_of(d):
    if d["op"] == "s_nop": return int(d["text"].split()[1], 0) + 1
    return 1

def check_seq(seq, name="", strict_wait=True):
    P = [parse(s) for s in seq if not s.endswith(":") and not s.startswith(".")]
    probs = []
    for i, c in enumerate(P):
        if c["kind"] in ("ctl",) : continue
        dist = 0
        for j in range(i - 1, max(-1, i - 40), -1):
            p = P[j]
            need = 0; why = ""
            pd = set(p["defs"]); cu = set(c["uses"]); cd = set(c["defs"])
            vd = {r for r in pd if r[0] in "va"}
            sd = {r for r in pd if r[0] in ("s", "vcc")}
            if p["kind"] == "valu":
                if c["kind"] == "mfma" and vd & cu: need, why = 2, "valu->mfma"
                if c["kind"] == "valu":
                    if p.get("trans") and not c.get("trans") and vd & cu: need, why = max(need, 1), "trans->valu"
                    if c.get("perm") and vd & cu: need, why = 2, "valu->permlane"
                    if c.get("dpp") and vd & cu: need, why = 2, "valu->dpp"
                    if c.get("rdlane") and vd & cu: need, why = max(need, 1), "valu->readlane"
                    if sd & cu: need, why = max(need, 2), "valu sgpr->valu"
                    if c.get("rdlane") and sd & cu: need, why = 4, "valu sgpr->lane sel"
                if c["kind"] == "vmem" and sd & cu: need, why = 5, "valu sgpr->vmem"
                if ("exec", 0) in pd and c["kind"] == "mfma": need, why = 4, "exec->mfma"
                if ("exec", 0) in pd and c["kind"] == "valu" and (c.get("dpp")): need, why = 5, "exec->dpp"
                if ("exec", 0) in pd and c["kind"] == "valu" and (c.get("rdlane") or c.get("perm")): need, why = 4, "exec->lane"
            if p["kind"] == "mfma":
                big = p["passes"] == 8
                if c["kind"] == "mfma":
                    if vd & set(c["a"] + c["b"]): need, why = (12 if big else 8), "mfma D->mfma AB"
                    cc = set(c["c"])
                    if vd & cc and not (cc == vd and c["passes"] == p["passes"]): need, why = max(need, 10 if big else 6), "mfma D->mfma C overlap"
                    if vd & cd and not (cd == vd): need, why = max(need, 12 if big else 8), "mfma WAW partial"
                elif c["kind"] in ("valu", "vmem", "ds"):
                    if vd & (cu | cd): need, why = (12 if big else 8), "mfma D->valu/mem"
                    if c["kind"] == "valu" and set(p["c"]) & cd: need, why = max(need, 7 if big else 3), "mfma C WAR"
            if p["kind"] == "salu" and ("m0", 0) in pd and c.get("dma"): need, why = 1, "m0->dma"
            if p["kind"] == "vmem" and p.get("store") and p.get("wide") and set(p["data"]) & cd and c["kind"] in ("valu", "mfma", "ds", "vmem"):
                need, why = 2, "store data WAR"
            if need > dist:
                probs.append(f"{name}: HAZARD {why} need {need} have {dist}: [{p['text']}] -> [{c['text']}]")
            dist += ws_of(p)
            if dist >= 20: break
    vm = []
    lg = []
    for i, c in enumerate(P):
        if c["op"] == "s_waitcnt":
            m = re.search(r"vmcnt\((\d+)\)", c["text"])
            if m:
                n = int(m.group(1)); vm = vm[len(vm) - n:] if n < len(vm) else vm
                if n == 0: vm = []
            m = re.search(r"lgkmcnt\((\d+)\)", c["text"])
            if m:
                n = int(m.group(1))
                if any(x[1] == "smem" for x in lg) and n > 0: pass
                else:
                    lg = lg[len(lg) - n:] if n < len(lg) else lg
                    if n == 0: lg = []
            continue
        touched = (set(c["uses"]) | set(c["defs"])) - {("a", 255)}
        for q, nm in ((vm, "vmcnt"), (lg, "lgkmcnt")):
            for (dd, kind, txt) in q:
                if dd & touched:
                    probs.append(f"{name}: MISSING {nm} wait: [{txt}] -> [{c['text']}]")
        if c["kind"] == "vmem":
            vm.append((set(c["defs"]), "vmem", c["text"]))
            if len(vm) > 63: probs.append(f"{name}: vmcnt overflow {len(vm)} at [{c['text']}]")
        elif c["kind"] == "ds": lg.append((set(c["defs"]), "ds", c["text"]))
        elif c["kind"] == "smem": lg.append((set(c["defs"]), "smem", c["text"]))
    return probs

def linearise(L, trips=2):
    out = []
    end = next(i for i, l in enumerate(L) if l.startswith("s_endpgm"))
    labpos = {l[:-1]: i for i, l in enumerate(L) if l.endswith(":")}
    i = 0
    seen = {}
    while i <= end:
        l = L[i]
        out.append(l)
        m = re.match(r"s_cbranch_\w+\s+(\S+)", l)
        if m and labpos.get(m.group(1), 1 << 30) < i:
            seen[i] = seen.get(i, 1)
            if seen[i] < trips:
                seen[i] += 1
                i = labpos[m.group(1)]
                continue
        i += 1
    return out

HEADER = open("adaLN_cond__mha_block_cached__glu_gated_swiglu__prompt.s.ref").read().split("; Override launch")[0]

def build_file(kernels, launches=None):
    launches = launches or kernels
    s = HEADER
    for k in launches: s += k.launch() + "\n"
    s += '.amdgcn_target "amdgcn-amd-amdhsa--gfx950"\n.text\n'
    for k in kernels: s += k.text() + "\n"
    s += "code_end:\n"
    s += '.section .rodata,"a"\n'
    for k in kernels: s += ".p2align 6\n" + k.desc() + "\n"
    return s


def autowait(lines):
    out = []; lg = []; vm = []
    for l in lines:
        if l.endswith(":") or l.startswith("."):
            out.append(l); continue
        c = parse(l)
        if c["op"] == "NEED": c["uses"] = regs_of(l)
        if c["op"] == "s_waitcnt":
            m = re.search(r"vmcnt\((\d+)\)", l)
            if m: n = int(m.group(1)); vm = vm[len(vm) - n:] if 0 < n < len(vm) else ([] if n == 0 else vm)
            m = re.search(r"lgkmcnt\((\d+)\)", l)
            if m: n = int(m.group(1)); lg = lg[len(lg) - n:] if 0 < n < len(lg) else ([] if n == 0 else lg)
            out.append(l); continue
        touched = set(c["uses"]) | set(c["defs"])
        w = []
        hit = [i for i, d in enumerate(vm) if d & touched]
        if hit:
            n = len(vm) - 1 - max(hit); w.append(f"vmcnt({n})"); vm = vm[len(vm) - n:] if n else []
        hit = [i for i, d in enumerate(lg) if d[0] & touched]
        if hit:
            n = len(lg) - 1 - max(hit)
            if any(x[1] for x in lg): n = 0
            n = min(n, 15)
            w.append(f"lgkmcnt({n})"); lg = lg[len(lg) - n:] if n else []
        if w: out.append("s_waitcnt " + " ".join(w))
        if c["op"] == "NEED": continue
        out.append(l)
        if c["kind"] == "vmem": vm.append(set(c["defs"]))
        elif c["kind"] == "ds": lg.append((set(c["defs"]), False))
        elif c["kind"] == "smem": lg.append((set(c["defs"]), True))
    return out


def resolve_waits(lines):
    out = []; q = []
    for l in lines:
        if l.startswith("WAITV"):
            body, _, extra = l[5:].partition("|")
            tags = set(body.split())
            have = set(q)
            assert tags <= have, (tags - have)
            last = max(i for i, t in enumerate(q) if t in tags)
            n = len(q) - 1 - last
            assert n <= 63
            out.append(f"s_waitcnt vmcnt({n}) {extra.strip()}".strip()); continue
        if l.startswith(("buffer_", "global_")) and ";@-" not in l:
            q.append(l.split(";@")[1].strip() if ";@" in l else None)
        out.append(l)
    return out
```

```python
from fw import K, R, resolve_waits
from layout import *

BIAS = 96.0
THR = 100.0

def cost(op):
    return 8 if op.startswith(("v_exp", "v_rcp")) else 4

def pour(gaps, cap, ops):
    tot_cap = sum(cap[g] for g in gaps); tot = sum(cost(o) for o in ops)
    out = {g: [] for g in gaps}
    over = tot > tot_cap
    gi = 0; cum_cap = cap[gaps[0]]; acc = 0; used = 0
    for o in ops:
        c = cost(o)
        while gi < len(gaps) - 1 and ((not over and used + c > cap[gaps[gi]]) or acc + c / 2 > cum_cap * tot / tot_cap):
            gi += 1; cum_cap += cap[gaps[gi]]; used = 0
        out[gaps[gi]].append(o); used += c; acc += c
    return out

def k_attn(bias=BIAS, thr=THR, stamps=False, touch=True, up=6, upw=12, kvt=False, pol=''):
    k = K("attn_kernel", (256, 1, 1), 256, lds=163840, vgpr=256, agpr=256, sgpr=72)
    e = k.e
    done = k.lab("done")
    if stamps: k.stamps_on(1)
    stamp = k.stamp
    S = lambda b, qh: 64 + 32 * b + 16 * qh
    P = lambda b, qh: 128 + 16 * b + 8 * qh
    NM = lambda qh: 160 + 16 * qh
    Q = lambda qh, ks: 192 + 32 * qh + 4 * ks
    O = lambda qh, db: 64 * qh + 16 * db
    KF = lambda ks: 128 + 4 * ks
    VF = lambda ks2, db: 160 + 16 * ks2 + 4 * db
    KA_ = lambda ks: 8 + ks
    VA = lambda db: 16 + db
    Lr = lambda qh: 20 + qh
    LT = lambda qh: 22 + qh
    TMP = lambda qh, j: 32 + 8 * qh + (j % 4) * 2
    kslot = lambda j: (j % 8) * 8192
    vslot = lambda j: 65536 + (j % 8) * 8192
    mf = lambda d, a, b, c: f"v_mfma_f32_32x32x16_bf16 {d}, {a}, {b}, {c}"
    ASB = 159744
    wslot = lambda ks: (32768 + (ks % 27) * 4096) if ks % 27 < 8 else (81920 + (ks % 27 - 8) * 4096)

    e(f"s_cmp_ge_u32 s2, 256\ns_cbranch_scc1 {done}")
    stamp()
    e(f"s_load_dwordx2 s[10:11], s[0:1], {KA['ws']}")
    e(f"s_load_dwordx2 s[8:9], s[0:1], {KA['wq']}")
    e(f"s_load_dwordx4 s[4:7], s[0:1], {KA['k']}")
    e("v_and_b32 v1, 63, v0\nv_lshrrev_b32 v2, 6, v0\nv_lshlrev_b32 v24, 5, v0\nv_readfirstlane_b32 s40, v2")
    e("s_and_b32 s41, s2, 7\ns_lshl_b32 s41, s41, 2\ns_bfe_u32 s42, s2, 0x20003\ns_add_u32 s41, s41, s42\ns_lshr_b32 s42, s2, 5")
    e("v_lshlrev_b32 v3, 4, v1")
    e("s_lshl_b32 s43, s40, 11")
    e("v_lshrrev_b32 v26, 4, v1\nv_and_b32 v27, 15, v1")
    e("v_lshlrev_b32 v28, 2, v26\nv_xor_b32 v28, v28, v27\nv_lshlrev_b32 v28, 4, v28\nv_lshl_add_u32 v6, v26, 8, v28\nv_lshl_add_u32 v7, v26, 13, v28")
    e("s_lshl_b32 s46, s42, 3\ns_lshl_b32 s47, s40, 1\ns_add_u32 s46, s46, s47")
    e("s_lshl_b32 s48, s46, 15\ns_add_u32 s49, s48, 0x8000")
    e("s_lshl_b32 s50, s40, 15\ns_lshl_b32 s51, s41, 8\ns_add_u32 s50, s50, s51")
    e("s_lshl_b32 s51, s40, 10")
    e("s_waitcnt lgkmcnt(0)")
    k.srd(32, 10, 11, 3072 * 16, off=MODP)
    e(f"s_movk_i32 s55, 8192")
    e("buffer_load_dwordx4 v[32:35], v24, s[32:35], s55 offen\nbuffer_load_dwordx4 v[36:39], v24, s[32:35], s55 offen offset:16")
    e("buffer_load_dwordx4 v[40:43], v24, s[32:35], 0 offen\nbuffer_load_dwordx4 v[44:47], v24, s[32:35], 0 offen offset:16 ;@as")
    k.srd(20, 8, 9, 512 * 8192)
    k.srd(24, 10, 11, 0x200000, off=XHF)
    XR = lambda ks, qh: 64 + (8 * ks + 4 * qh) % 192
    def w_load(ks):
        return [f"s_add_u32 m0, s51, {wslot(ks)}", "s_add_u32 s50, s50, 0x20000", f"buffer_load_dwordx4 v7, s[20:23], s50 offen lds ;@ks{ks}"]
    def x_load(ks):
        r = [f"buffer_load_dwordx4 {R('v', XR(ks, qh), 4)}, v3, s[24:27], s{48+qh} offen offset:{(ks%4)*1024} ;@ks{ks}" for qh in range(2)]
        if ks % 4 == 3: r += ["s_add_u32 s48, s48, 4096", "s_add_u32 s49, s49, 4096"]
        return r
    e("s_sub_u32 s50, s50, 0x20000")
    for ks in range(4):
        for l in w_load(ks) + x_load(ks): e(l)
    stamp()
    e("s_and_b32 s44, s40, 1\ns_lshl_b32 s44, s44, 3")
    e("v_add_u32 v28, s44, v26\nv_xor_b32 v28, v28, v27\nv_lshlrev_b32 v28, 4, v28\nv_lshl_add_u32 v4, v26, 8, v28\nv_xor_b32 v5, 64, v4")
    e("s_lshl_b32 s45, s41, 19")
    e("s_add_u32 s12, s4, s45\ns_addc_u32 s13, s5, 0\ns_and_b32 s13, s13, 0xffff\ns_mov_b32 s14, 0x80000\ns_mov_b32 s15, 0x20000")
    e("s_add_u32 s16, s6, s45\ns_addc_u32 s17, s7, 0\ns_and_b32 s17, s17, 0xffff\ns_mov_b32 s18, 0x80000\ns_mov_b32 s19, 0x20000")
    e("s_mov_b32 s52, s43\ns_mov_b32 s53, s43")
    e(f"s_load_dwordx2 s[4:5], s[0:1], {KA['wo']}\ns_load_dwordx2 s[6:7], s[0:1], {KA['w2']}")
    def k_dma(j):
        return [f"s_add_u32 m0, s43, {kslot(j)}", "s_nop 0", "buffer_load_dwordx4 v4, s[12:15], s52 offen lds",
                f"buffer_load_dwordx4 v5, s[12:15], s52 offen offset:1024 lds ;@k{j}", "s_add_u32 s52, s52, 8192"]
    def v_dma(j):
        return [f"s_add_u32 m0, s43, {vslot(j)}", "s_nop 0", "buffer_load_dwordx4 v6, s[16:19], s53 offen lds",
                f"buffer_load_dwordx4 v6, s[16:19], s53 offen offset:1024 lds ;@v{j}", "s_add_u32 s53, s53, 8192"]
    def wait_for(tags, extra=""):
        return "WAITV " + " ".join(f"{t[0]}{t[1]}" if t[0] != "as" else "as" for t in tags) + (" | " + extra if extra else "")
    for ks in range(4, max(up, upw)):
        if ks < upw:
            for l in w_load(ks): e(l)
        if ks < up:
            for l in x_load(ks): e(l)
    nxt_x = [up]; nxt_w = [upw]
    nomodf = k.lab("nomodf")
    e(f"s_cmp_ge_u32 s2, 4\ns_cbranch_scc1 {nomodf}")
    e("s_add_u32 s55, s2, 2\ns_lshl_b32 s56, s55, 11\ns_lshl_b32 s55, s55, 13")
    e("buffer_load_dwordx4 v[48:51], v24, s[32:35], s55 offen ;@-\nbuffer_load_dwordx4 v[52:55], v24, s[32:35], s55 offen offset:16 ;@-")
    k.srd(36, 10, 11, 3072 * 4, off=MODF)
    e("v_lshlrev_b32 v25, 3, v0")
    e("s_waitcnt vmcnt(0)")
    e("v_add_f32 v48, v48, v49\nv_add_f32 v50, v50, v51\nv_add_f32 v52, v52, v53\nv_add_f32 v54, v54, v55\nv_add_f32 v48, v48, v50\nv_add_f32 v49, v52, v54")
    e("v_cvt_pk_bf16_f32 v48, v48, v49\nv_and_b32 v49, 0xffff0000, v48\nv_lshlrev_b32 v48, 16, v48")
    e("buffer_store_dwordx2 v[48:49], v25, s[36:39], s56 offen ;@-")
    e("s_waitcnt vmcnt(0)")
    k.label(nomodf)
    e(f"s_load_dwordx4 s[36:39], s[0:1], {KA['w1']}")
    e("v_and_b32 v26, 0x13, v1\nv_bfe_u32 v27, v1, 2, 1\nv_lshl_or_b32 v26, v27, 3, v26\nv_bfe_u32 v27, v1, 3, 1\nv_lshl_or_b32 v26, v27, 2, v26")
    e("v_and_b32 v27, 15, v26\nv_lshrrev_b32 v28, 5, v1\nv_xor_b32 v27, v27, v28")
    e("v_lshlrev_b32 v27, 4, v27\nv_lshl_add_u32 v8, v26, 8, v27")
    for ks in range(1, 8): e(f"v_xor_b32 v{KA_(ks)}, {ks*32}, v8")
    e("v_bfe_u32 v26, v1, 2, 2\nv_and_b32 v27, 3, v1\nv_lshrrev_b32 v28, 1, v27\nv_and_b32 v27, 1, v27\nv_lshl_or_b32 v27, v27, 1, v28")
    e("v_lshrrev_b32 v28, 5, v1\nv_lshl_add_u32 v28, v28, 3, v26\nv_lshlrev_b32 v16, 8, v28\nv_lshl_add_u32 v16, v26, 6, v16")
    e("v_bfe_u32 v28, v1, 4, 1\nv_lshl_add_u32 v16, v28, 5, v16\nv_lshl_add_u32 v16, v27, 3, v16")
    for db in range(1, 4): e(f"v_xor_b32 v{VA(db)}, {db*64}, v16")
    for db in range(4): e(f"v_add_u32 v{20+db}, 0x8000, v{VA(db)}")
    for db in range(4): e(f"v_add_u32 v{VA(db)}, 0x10000, v{VA(db)}")
    e(f"v_lshrrev_b32 v2, 5, v1\nv_lshlrev_b32 v2, 5, v2\nv_add_u32 v2, {ASB}, v2")
    e(f"v_lshlrev_b32 v25, 3, v0\nv_add_u32 v25, {ASB}, v25")
    k.srd(28, 10, 11, 0x1000000, off=OF)
    e(f"s_mov_b32 s54, {f32(2.0**thr)}")
    e(wait_for({("as", 0)}))
    for b in (32, 36, 40, 44): e(f"v_add_f32 v{b}, v{b}, v{b+1}\nv_add_f32 v{b+2}, v{b+2}, v{b+3}")
    for b in (32, 36, 40, 44): e(f"v_add_f32 v{b}, v{b}, v{b+2}")
    e("v_cvt_pk_bf16_f32 v32, v32, v36\nv_cvt_pk_bf16_f32 v40, v40, v44")
    e("v_and_b32 v33, 0xffff0000, v32\nv_lshlrev_b32 v32, 16, v32\nv_and_b32 v35, 0xffff0000, v40\nv_lshlrev_b32 v34, 16, v40")
    e("v_add_f32 v32, 1.0, v32\nv_add_f32 v33, 1.0, v33\nv_cvt_pk_bf16_f32 v32, v32, v33")
    e("v_and_b32 v33, 0xffff0000, v32\nv_lshlrev_b32 v32, 16, v32")
    for r in (32, 33, 34, 35): e(f"v_mul_f32 v{r}, {f32(QSCALE)}, v{r}")
    e(f"ds_write_b64 v25, v[32:33]\nds_write_b64 v25, v[34:35] offset:2048")
    WF = lambda ks, db: 128 + 16 * (ks % 2) + 4 * db
    AS = lambda ks: 32 + 16 * (ks % 2)
    wbase = [32768]
    def wreads(ks):
        r = []
        a = wslot(ks)
        if not (wbase[0] <= a and a + 4096 <= wbase[0] + 65536):
            wbase[0] = a
            for db in range(4): r.append(f"v_add_u32 v{20+db}, {(a-65536) & 0xffffffff:#x}, v{VA(db)}")
        r += [f"ds_read_b64_tr_b16 {R('a', WF(ks, db)+2*i, 2)}, v{20+db} offset:{a-wbase[0]+i*1024}" for db in range(4) for i in range(2)]
        return r
    def asreads(ks):
        return [f"ds_read_b128 {R('v', AS(ks)+4*j, 4)}, v2 offset:{(j>>1)*2048+ks*64+(j&1)*16}" for j in range(4)]
    def modulate(ks):
        r = []
        for qh in range(2):
            for j in range(4):
                x = XR(ks, qh) + j; t = 24 + 2 * j
                for h in range(2):
                    r.append(f"v_fma_mix_f32 v{t+h}, v{x}, v{AS(ks)+2*j+h}, v{AS(ks)+8+2*j+h} op_sel:[{h},0,0] op_sel_hi:[1,0,0]")
            for j in range(4):
                r.append(f"v_cvt_pk_bf16_f32 v{XR(ks, qh)+j}, v{24+2*j}, v{25+2*j}")
        return r
    e(wait_for({("ks", 1)}, "lgkmcnt(0)"))
    e("s_barrier")
    stamp()
    for l in asreads(0) + wreads(0) + asreads(1): e(l)
    e("s_waitcnt lgkmcnt(12)")
    for l in modulate(0): e(l)
    for ks in range(32):
        e("s_waitcnt lgkmcnt(0)")
        pre = [[] for _ in range(8)]
        nv = []
        if ks + 1 < 32:
            wr = wreads(ks + 1)
            nv = [l for l in wr if l.startswith("v_")]; wr = [l for l in wr if not l.startswith("v_")]
        else: wr = []
        ar = asreads(ks + 2) if ks + 2 < 32 else []
        bw = wait_for({("ks", ks + 3)} | ({("k", 0), ("k", 1)} if ks == 28 else set())) if (ks % 2 == 0 and ks + 2 < 32) else None
        ld = []
        for _ in range(2):
            if nxt_w[0] < 32 and nxt_w[0] <= ks + 22:
                ld += w_load(nxt_w[0]); nxt_w[0] += 1
            if nxt_x[0] < 32 and nxt_x[0] <= ks + 18:
                ld += x_load(nxt_x[0]); nxt_x[0] += 1
        if ks == 14: ld += k_dma(0)
        if ks == 15: ld += k_dma(1)
        if ks == 16: ld += v_dma(0)
        if ks == 17: ld += k_dma(2)
        if ks == 18: ld += v_dma(1)
        if ks == 19: ld += k_dma(3)
        even = ks % 2 == 0
        if even and ks + 2 < 32:
            pre[0] += [bw, "s_barrier"]
        pre[0] += nv
        mods = modulate(ks + 1) if ks + 1 < 32 else []
        order = [(0, db) for db in range(4)] + [(1, db) for db in range(4)] if ks == 31 else [(qh, db) for db in range(4) for qh in range(2)]
        lds_ops = wr + ar
        for i, l in enumerate(lds_ops): pre[1 + i * 6 // max(len(lds_ops), 1)].append(l)
        for i, l in enumerate(ld): pre[1 + i * 7 // len(ld)].append(l)
        cap = [8 if (g == 0 and even) else 24 for g in range(8)]
        post = pour(list(range(8)), cap, mods) if mods else {g: [] for g in range(8)}
        for g, (qh, db) in enumerate(order):
            acc = R('a', O(qh, db), 16)
            e(mf(acc, R('a', WF(ks, db), 4), R('v', XR(ks, qh), 4), acc if ks else "0"))
            for l in pre[g] + post[g]: e(l)
    stamp()
    def kreads(j): return [f"ds_read_b128 {R('a', KF(ks), 4)}, v{KA_(ks)} offset:{kslot(j)}" for ks in range(8)]
    def vreads(j): return [f"ds_read_b64_tr_b16 {R('a', VF(ks2, db)+2*i, 2)}, v{VA(db)} offset:{vslot(j)-65536+(16*ks2+4*i)*256}"
                           for ks2 in range(2) for db in range(4) for i in range(2)]
    def qcvt(qh):
        r = []
        for db in range(4):
            for h in range(2):
                for j in range(8): r.append(f"v_accvgpr_read_b32 v{32+8*h+j}, a{O(qh, db)+8*h+j}")
                for j in range(4): r.append(f"v_cvt_pk_bf16_f32 v{Q(qh, 2*db+h)+j}, v{32+8*h+2*j}, v{33+8*h+2*j}")
        return r
    def rowmax(b, qh, dst, tmp):
        s = S(b, qh); r = []
        r.append(f"v_max3_f32 v{dst}, v{s}, v{s+1}, v{s+2}")
        r.append(f"v_max3_f32 v{tmp}, v{s+3}, v{s+4}, v{s+5}")
        for j in range(6, 14, 4):
            r.append(f"v_max3_f32 v{dst}, v{dst}, v{s+j}, v{s+j+1}")
            r.append(f"v_max3_f32 v{tmp}, v{tmp}, v{s+j+2}, v{s+j+3}")
        r.append(f"v_max3_f32 v{dst}, v{dst}, v{s+14}, v{s+15}")
        r.append(f"v_max_f32 v{dst}, v{dst}, v{tmp}")
        r.append(f"v_mov_b32 v{tmp}, v{dst}")
        r.append("s_nop 1")
        r.append(f"v_permlane32_swap_b32 v{dst}, v{tmp}")
        r.append(f"v_max_f32 v{dst}, v{dst}, v{tmp}")
        return r
    def softmax(b, qh):
        seq = []; pend = None
        for j in range(8):
            r = S(b, qh) + 2 * j; t = TMP(qh, j)
            seq.append(f"v_exp_f32 v{t}, v{r}")
            if pend: seq += pend[:1]
            seq.append(f"v_exp_f32 v{t+1}, v{r+1}")
            if pend: seq += pend[1:]
            if j == 0: pend = [f"v_add_f32 v{LT(qh)}, v{t}, v{t+1}"]
            else: pend = [f"v_add_f32 v{LT(qh)}, v{LT(qh)}, v{t}", f"v_add_f32 v{LT(qh)}, v{LT(qh)}, v{t+1}"]
            pend.append(f"v_cvt_pk_bf16_f32 v{P(b, qh)+j}, v{t}, v{t+1}")
        return seq + pend
    def init_nm(qh):
        d, t = 26 + 2 * qh, 27 + 2 * qh
        r = rowmax(0, qh, d, t) + [f"v_sub_f32 v{d}, {f32(-bias)}, v{d}"]
        r += [f"v_mov_b32 v{NM(qh)+j}, v{d}" for j in range(16)]
        r += [f"v_add_f32 v{S(0, qh)+j}, v{S(0, qh)+j}, v{d}" for j in range(16)]
        r += [f"v_mov_b32 v{Lr(qh)}, 0"]
        return r
    for l in kreads(0): e(l)
    for l in qcvt(0): e(l)
    e("s_waitcnt lgkmcnt(0)")
    q1 = pour(list(range(8)), [24] * 8, qcvt(1))
    for ks in range(8):
        s = R('v', S(0, 0), 16)
        e(mf(s, R('a', KF(ks), 4), R('v', Q(0, ks), 4), s if ks else "0"))
        for l in q1[ks]: e(l)
    e("s_nop 0")
    kr = kreads(1)
    i0 = pour(list(range(3, 8)), [24] * 8, init_nm(0))
    for ks in range(8):
        s = R('v', S(0, 1), 16)
        e(mf(s, R('a', KF(ks), 4), R('v', Q(1, ks), 4), s if ks else "0"))
        if ks > 0: e(kr[ks - 1])
        if ks in (0, 1, 2): e("s_nop 2")
        for l in i0.get(ks, []): e(l)
    e(kr[7])
    for l in softmax(0, 0): e(l)
    for l in init_nm(1): e(l)
    e(wait_for({("k", 2), ("v", 0)}, "lgkmcnt(0)"))
    e("s_barrier")
    for l in v_dma(2) + k_dma(4): e(l)
    kn = [5]; vn = [3]
    stamp()

    slow_blocks = []
    def iteration(t, first=False, tail=None, loopctl=None, exact=False, extra=()):
        cur, nxt = t % 2, 1 - t % 2
        has_qk = tail != 63
        mfs = []
        if has_qk:
            for qh in range(2):
                for ks in range(8):
                    s = R('v', S(nxt, qh), 16)
                    mfs.append(mf(s, R('a', KF(ks), 4), R('v', Q(qh, ks), 4), s if ks else R('v', NM(qh), 16)))
        else:
            mfs += [None] * 16
        for qh in range(2):
            for ks2 in range(2):
                for db in range(4):
                    o = R('a', O(qh, db), 16)
                    mfs.append(mf(o, R('a', VF(ks2, db), 4), R('v', P(cur, qh) + 4 * ks2, 4), "0" if (first and ks2 == 0) else o))
        pre = [[] for _ in range(32)]; post = [[] for _ in range(32)]
        vr = vreads(t)
        pre[0] += vr[0:2]; pre[1] += vr[2:4]
        for g in range(2, 14): pre[g].append(vr[g + 2])
        pre[15].append("s_waitcnt lgkmcnt(0)")
        if tail is None or tail < 62:
            for g, l in zip((16, 19, 21, 22, 24, 26, 27, 28), kreads(t + 2)): pre[g].append(l)
        if tail is None:
            if t < 4:
                pre[2].insert(0, f"s_add_u32 m0, s43, {vslot(vn[0])}")
                pre[3].append("buffer_load_dwordx4 v6, s[16:19], s53 offen lds")
                pre[5].append(f"buffer_load_dwordx4 v6, s[16:19], s53 offen offset:1024 lds ;@v{vn[0]}")
                pre[6].append("s_add_u32 s53, s53, 8192")
                pre[8].insert(0, f"s_add_u32 m0, s43, {kslot(kn[0])}")
                pre[9].append("buffer_load_dwordx4 v4, s[12:15], s52 offen lds")
                pre[11].append(f"buffer_load_dwordx4 v5, s[12:15], s52 offen offset:1024 lds ;@k{kn[0]}")
                pre[12].append("s_add_u32 s52, s52, 8192")
                kn[0] += 1; vn[0] += 1
            else: assert kn[0] % 8 == (t + 9) % 8 and vn[0] % 8 == (t + 7) % 8
            pre[17].append(f"s_add_u32 m0, s43, {kslot(kn[0])}")
            pre[18].append("buffer_load_dwordx4 v4, s[12:15], s52 offen lds")
            pre[20].append(f"buffer_load_dwordx4 v5, s[12:15], s52 offen offset:1024 lds ;@k{kn[0]}")
            pre[22].insert(0, f"s_add_u32 m0, s43, {vslot(vn[0])}")
            pre[23].append("buffer_load_dwordx4 v6, s[16:19], s53 offen lds")
            pre[25].append(f"buffer_load_dwordx4 v6, s[16:19], s53 offen offset:1024 lds ;@v{vn[0]}")
            pre[21].append("s_add_u32 s52, s52, 8192")
            pre[26].append("s_add_u32 s53, s53, 8192")
            kn[0] += 1; vn[0] += 1
            PR = (20, 22, 24, 26, 32, 34, 8)
            if t == 5:
                for i in range(2): pre[(17, 20)[i]].append(f"ds_read_b64_tr_b16 {R('a', 192+2*i, 2)}, v25 offset:{i*256}")
            if t == 6:
                pre[14].append("buffer_store_dwordx4 a[192:195], v3, s[64:67], s21 offen")
                pre[29].append("buffer_load_dword a255, v0, s[68:71], s58 offen")
            if t == 7:
                pre[13].insert(0, "s_mov_b32 m0, s51")
                pre[14].append("buffer_load_dwordx4 v24, s[60:63], s20 offen lds")
                pre[29] += ["s_mov_b64 s[68:69], s[38:39]", "s_mov_b32 s70, s59"]
            if t == 8:
                pre[14] += [f"s_mov_b64 s[{PR[i]}:{PR[i]+1}], s[{PR[i+1]}:{PR[i+1]+1}]" for i in range(3)]
                pre[29] += [f"s_mov_b64 s[{PR[i]}:{PR[i]+1}], s[{PR[i+1]}:{PR[i+1]+1}]" for i in range(3, 5)]
            if t == 9:
                pre[14] += ["s_mov_b64 s[34:35], s[8:9]", "s_mov_b32 s59, 0"]
                pre[29] += ["s_cmp_eq_u32 s56, 4", "s_cselect_b64 s[60:61], s[6:7], s[60:61]"]
            if t == 10:
                pre[14] += ["s_cmp_eq_u32 s56, 4", "s_cselect_b32 s62, s57, s62"]
            pre[30].append(wait_for({("k", t + 3), ("v", t + 1)}, "lgkmcnt(0)") if exact else "s_waitcnt vmcnt(24) lgkmcnt(0)")
        elif tail == 61: pre[30].append("s_waitcnt vmcnt(20) lgkmcnt(0)")
        elif tail == 62: pre[30].append("s_waitcnt vmcnt(16) lgkmcnt(0)")
        if loopctl: pre[29] += ["s_sub_u32 s56, s56, 1", "s_cmp_lg_u32 s56, 0"]
        if tail != 63: pre[31].append("s_barrier")
        if loopctl: pre[31].append(f"s_cbranch_scc1 {loopctl}")
        cap = [24 - 4 * len(pre[g]) for g in range(32)]
        for g, ops in pour(list(range(0, 15)), cap, softmax(cur, 1)).items(): post[g] += ops
        if not first:
            sl = k.lab("slow"); ret = k.lab("ret")
            post[15] += [f"v_max_f32 v26, v{LT(0)}, v{LT(1)}", "v_cmp_nge_f32 vcc, s54, v26", f"s_cbranch_vccnz {sl}", ret + ":"]
            slow_blocks.append((sl, ret, cur, has_qk))
        ops = [f"v_add_f32 v{Lr(0)}, v{Lr(0)}, v{LT(0)}", f"v_add_f32 v{Lr(1)}, v{Lr(1)}, v{LT(1)}"]
        if has_qk: ops += softmax(nxt, 0)
        for i, l in enumerate(extra): ops.insert(2 + i * 3, l.replace("|", "\n"))
        for g, o in pour(list(range(16, 31)), cap, ops).items(): post[g] += o
        for g in range(32):
            if mfs[g]: e(mfs[g])
            for l in pre[g] + post[g]: e(l)
    iteration(0, first=True, exact=True)
    setup = f"""s_mov_b32 s60, s4
s_and_b32 s61, s5, 0xffff
s_mov_b32 s62, {4096*1024}
s_mov_b32 s63, 0x20000
s_and_b32 s7, s7, 0xffff
s_mov_b32 s57, {1792*1024}
s_add_u32 s64, s10, {WOF:#x}|s_addc_u32 s65, s11, 0
s_and_b32 s65, s65, 0xffff
s_mov_b32 s66, {W2F-WOF+8*112*2048:#x}
s_mov_b32 s67, 0x20000
s_mov_b32 s68, s36
s_and_b32 s69, s37, 0xffff
s_and_b32 s39, s39, 0xffff
s_mov_b32 s70, {512*3584}
s_mov_b32 s71, 0x20000
s_mov_b32 s59, {512*3584}
s_lshl_b32 s20, s2, 14
s_lshl_b32 s49, s40, 8
s_add_u32 s20, s20, s49
s_add_u32 s22, s20, 64
s_add_u32 s24, s20, 128
s_add_u32 s26, s20, 192
s_mov_b32 s21, 0x7fff0000
s_lshl_b32 s23, s40, 20
s_lshl_b32 s49, s2, 11
s_add_u32 s23, s23, s49
s_add_u32 s25, s23, 1024
s_add_u32 s27, s23, 0x80000
s_add_u32 s33, s27, 1024
s_lshl_b32 s48, s2, 2
s_add_u32 s48, s48, s40
s_lshr_b32 s49, s48, 3
s_and_b32 s50, s48, 7
s_lshl_b32 s32, s49, 14
s_lshl_b32 s55, s50, 7
s_add_u32 s32, s32, s55
s_add_u32 s34, s32, 64
s_mov_b32 s8, 0x7fff0000
s_mul_i32 s35, s50, 112
s_add_u32 s35, s35, s49
s_lshl_b32 s35, s35, 11
s_add_u32 s35, s35, {W2F-WOF:#x}
s_cmp_lt_u32 s48, 896|s_cselect_b32 s35, s35, 0x7fff0000
s_add_u32 s9, s35, 1024
s_mul_i32 s58, s48, 1792
s_lshl_b32 s51, s40, 10
s_add_u32 s51, s51, 131072
v_lshrrev_b32 v24, 2, v1
v_and_b32 v25, 3, v1
v_lshlrev_b32 v24, 10, v24
v_lshl_add_u32 v24, v25, 4, v24
v_bfe_u32 v30, v16, 8, 4
v_and_b32 v25, 63, v16
v_lshl_add_u32 v25, v30, 6, v25
v_add_u32 v25, s51, v25
v_lshlrev_b32 v0, 5, v1""".split("\n")
    n4 = (len(setup) + 3) // 4
    for t in range(1, 5): iteration(t, exact=True, extra=setup[(t-1)*n4:t*n4])
    e("s_mov_b32 s56, 7")
    loop = k.lab("loop")
    k.label(loop)
    if stamps == 2:
        e("s_memtime s[86:87]\ns_waitcnt lgkmcnt(0)")
        for r in range(95, 88, -1): e(f"s_mov_b32 s{r}, s{r-1}")
        e("s_mov_b32 s88, s86")
    for t in range(5, 13): iteration(t, loopctl=loop if t == 12 else None)
    stamp()
    for t in (61, 62, 63): iteration(t, tail=t)
    stamp()
    for qh in range(2):
        e(f"v_mov_b32 v26, v{Lr(qh)}\ns_nop 1\nv_permlane32_swap_b32 v{Lr(qh)}, v26\nv_add_f32 v26, v26, v{Lr(qh)}\nv_rcp_f32 v{Lr(qh)}, v26")
    e("s_lshl_b32 s48, s46, 18\ns_lshl_b32 s49, s41, 13\ns_add_u32 s48, s48, s49\ns_add_u32 s49, s48, 0x40000")
    e("v_add_u32 v27, 4096, v3")
    for qh in range(2):
        for db in range(4):
            b = 64 + 32 * ((4*qh+db) % 4)
            for j in range(16): e(f"v_accvgpr_read_b32 v{b+j}, a{O(qh, db)+j}")
            for j in range(16): e(f"v_mul_f32 v{b+j}, v{b+j}, v{Lr(qh)}")
            for j in range(8): e(f"v_cvt_pk_bf16_f32 v{b+16+j}, v{b+2*j}, v{b+2*j+1}")
            for h2 in range(2):
                f = 2 * db + h2
                e(f"buffer_store_dwordx4 {R('v', b+16+4*h2, 4)}, v{3 if f < 4 else 27}, s[28:31], s{48+qh} offen offset:{(f%4)*1024} {pol}")
    if stamps == 2:
        e("s_mov_b32 s72, s80")
        for i in range(7): e(f"s_mov_b32 s{74+2*i}, s{94-i}") if i < 4 else None
        k.extra = [90, 89, 88]
    k.stamp_flush(40, 4)
    k.L = resolve_waits(k.L)
    k.label(done)
    e("s_endpgm")
    for sl, ret, cur, has_qk in slow_blocks:
        nxt = 1 - cur
        k.label(sl)
        if stamps: e("s_add_u32 s100, s100, 1")
        e("s_nop 15")
        for qh in range(2):
            for l in rowmax(cur, qh, 26, 27): e(l)
            e(f"v_add_f32 v26, {f32(bias)}, v26\nv_max_f32 v26, 0, v26")
            e("v_mul_f32 v27, -0.5, v26\nv_exp_f32 v27, v27")
            for j in range(16): e(f"v_sub_f32 v{NM(qh)+j}, v{NM(qh)+j}, v26")
            if has_qk:
                for j in range(16): e(f"v_sub_f32 v{S(nxt, qh)+j}, v{S(nxt, qh)+j}, v26")
            for j in range(16): e(f"v_sub_f32 v{S(cur, qh)+j}, v{S(cur, qh)+j}, v26")
            e(f"v_mul_f32 v{Lr(qh)}, v{Lr(qh)}, v27\nv_mul_f32 v{Lr(qh)}, v{Lr(qh)}, v27")
            for l in softmax(cur, qh): e(l)
            for j0 in range(0, 64, 8):
                for j in range(8): e(f"v_accvgpr_read_b32 v{48+j}, a{64*qh+j0+j}")
                for j in range(8): e(f"v_mul_f32 v{48+j}, v{48+j}, v27")
                for j in range(8): e(f"v_mul_f32 v{48+j}, v{48+j}, v27")
                for j in range(8): e(f"v_accvgpr_write_b32 a{64*qh+j0+j}, v{48+j}")
        e("s_nop 1")
        e(f"s_branch {ret}")
    return k
```

```python
from fw import K, R, autowait
from layout import *

def rnd_pairs(e, regs, tmp):
    n = len(regs) // 2
    for j in range(n): e(f"v_cvt_pk_bf16_f32 v{tmp[j]}, v{regs[2*j]}, v{regs[2*j+1]}")
    for j in range(n): e(f"v_lshlrev_b32 v{regs[2*j]}, 16, v{tmp[j]}\nv_and_b32 v{regs[2*j+1]}, 0xffff0000, v{tmp[j]}")

def k_gemm(mode, D=12, skip_w=False, skip_a=False, rot=None, pad=0, stamps=False, pol=''):
    cfg = dict(
        A=dict(name="gemma_kernel", K=4096, act=OF, wptr=("wo",), wstride=1024, nt=8),
        B=dict(name="gemmb_kernel", K=512, act=H2F, wptr=("w1", "w3"), wstride=3584, nt=56),
        C=dict(name="gemmc_kernel", K=1792, act=HHF, wptr=("w2",), wstride=1024, nt=8))[mode]
    Kt = cfg["K"]; KS = Kt // 16; KS4 = KS // 4
    D = min(D, KS4); DL = max(D, 8)
    if rot is None: rot = KS4 // 8
    ARB = KS * 1024 + pad
    ng = 32 * cfg["nt"] + (112 if mode == "A" else 0)
    k = K(cfg["name"], (ng, 1, 1), 256, lds=4 * DL * 2048, vgpr=64 + 64 + 16 + 8 * D, sgpr=72)
    e = k.e
    ACC = 64; AF = 128; BF = 144
    done = k.lab("done")
    e(f"s_cmp_ge_u32 s2, {ng}\ns_cbranch_scc1 {done}")
    prep = k.lab("prep")
    if mode == "A": e(f"s_cmp_ge_u32 s2, 256\ns_cbranch_scc1 {prep}")
    if stamps: k.stamps_on({"A": 2, "C": 4}[mode])
    k.stamp()
    for i, p in enumerate(cfg["wptr"]): e(f"s_load_dwordx2 s[{4+2*i}:{5+2*i}], s[0:1], {KA[p]}")
    e(f"s_load_dwordx2 s[8:9], s[0:1], {KA['ws']}")
    e(f"s_load_dwordx2 s[10:11], s[0:1], {KA['x'] if mode == 'A' else KA['out']}")
    e("v_and_b32 v1, 63, v0\nv_lshrrev_b32 v2, 6, v0\ns_nop 0\nv_readfirstlane_b32 s40, v2")
    e("s_and_b32 s41, s2, 7\ns_lshl_b32 s41, s41, 2\ns_bfe_u32 s42, s2, 0x20003\ns_add_u32 s41, s41, s42\ns_lshr_b32 s42, s2, 5")
    e("v_lshlrev_b32 v3, 4, v1")
    if mode != "B":
        e("v_lshrrev_b32 v4, 3, v1\nv_and_b32 v5, 7, v1\nv_and_b32 v6, 2, v4\nv_lshlrev_b32 v6, 1, v6\nv_xor_b32 v5, v5, v6")
        e("v_lshlrev_b32 v4, 10, v4\nv_lshl_add_u32 v4, v5, 4, v4")
    else:
        e("v_lshrrev_b32 v4, 2, v1\nv_and_b32 v5, 3, v1\ns_movk_i32 s43, 3584\nv_mul_lo_u32 v4, v4, s43")
        e("v_xor_b32 v6, 2, v5\nv_lshl_add_u32 v7, v6, 4, v4\nv_lshl_add_u32 v4, v5, 4, v4")
    e("v_bfe_u32 v10, v1, 2, 2")
    e("v_and_b32 v11, 3, v1")
    e("v_lshrrev_b32 v12, 1, v11\nv_and_b32 v13, 1, v11\nv_lshl_or_b32 v11, v13, 1, v12")
    e("v_lshrrev_b32 v12, 5, v1")
    e("v_bfe_u32 v13, v1, 4, 1")
    e("v_lshl_add_u32 v12, v12, 3, v10")
    e(f"s_mul_i32 s44, s40, {DL*2048}")
    if mode != "B":
        e("v_lshlrev_b32 v8, 7, v12\nv_lshl_add_u32 v8, v13, 5, v8\nv_lshl_add_u32 v8, v11, 3, v8")
        e("v_lshrrev_b32 v14, 1, v10\nv_lshl_add_u32 v8, v14, 6, v8\ns_and_b32 s50, s40, 1\ns_lshl_b32 s50, s50, 6\nv_xor_b32 v8, s50, v8\nv_add_u32 v8, s44, v8\nv_xor_b32 v9, 64, v8")
    else:
        e("v_lshlrev_b32 v8, 6, v12\nv_lshl_add_u32 v8, v13, 10, v8\nv_lshl_add_u32 v8, v11, 3, v8")
        e("v_lshl_add_u32 v8, v13, 5, v8\nv_add_u32 v8, s44, v8\nv_xor_b32 v9, 32, v8")
    e("s_waitcnt lgkmcnt(0)")
    wbytes = Kt * cfg["wstride"]
    k.srd(12, 4, 5, wbytes)
    if mode == "B": k.srd(16, 6, 7, wbytes)
    k.srd(20, 8, 9, 64 * ARB, off=cfg["act"])
    e(f"s_mul_i32 s45, s41, {2*ARB}\ns_add_u32 s46, s45, {ARB}\ns_cmp_ge_u32 s40, 2\ns_cselect_b32 s47, s46, s45\ns_cselect_b32 s46, s45, s46\ns_mov_b32 s45, s47")
    e(f"s_lshl_b32 s47, s42, {7 if mode != 'B' else 6}")
    e("s_and_b32 s50, s40, 1\ns_lshr_b32 s51, s40, 1")
    e("s_lshl_b32 s52, s41, 1\ns_add_u32 s52, s52, s51")
    npre = 0
    if mode in "AC":
        k.srd(24, 8, 9, 3072 * 4, off=MODF)
        k.srd(28, 8, 9, 0x200000, off=X1F)
        k.srd(32, 10, 11, 0x200000)
        ch = 2 if mode == "A" else 5
        e("v_lshrrev_b32 v15, 5, v1\nv_lshlrev_b32 v15, 5, v15")
        e(f"s_lshl_b32 s53, s42, 8\ns_lshl_b32 s54, s50, 7\ns_add_u32 s53, s53, s54\ns_add_u32 s53, s53, {ch*2048}")
        for j in range(4):
            e(f"buffer_load_dwordx4 v[{16+4*j}:{19+4*j}], v15, s[24:27], s53 offen offset:{(j>>1)*64+(j&1)*16}")
        e("v_and_b32 v40, 31, v1\nv_lshlrev_b32 v40, 10, v40\nv_lshrrev_b32 v41, 5, v1\nv_lshl_add_u32 v40, v41, 4, v40")
        e("s_lshl_b32 s55, s52, 15\ns_lshl_b32 s56, s42, 7\ns_add_u32 s55, s55, s56\ns_lshl_b32 s56, s50, 6\ns_add_u32 s55, s55, s56")
        e("s_lshl_b32 s56, s52, 15\ns_lshl_b32 s57, s42, 12\ns_add_u32 s56, s56, s57\ns_lshl_b32 s57, s50, 11\ns_add_u32 s56, s56, s57")
        if mode == "A":
            e("buffer_load_dwordx4 v[32:35], v40, s[32:35], s55 offen\nbuffer_load_dwordx4 v[36:39], v40, s[32:35], s55 offen offset:32")
        else:
            e("buffer_load_dwordx4 v[32:35], v3, s[28:31], s56 offen\nbuffer_load_dwordx4 v[36:39], v3, s[28:31], s56 offen offset:1024")
        npre = 6
    else:
        k.srd(28, 8, 9, 64 * 112 * 1024, off=HHF)
        e(f"s_mul_i32 s56, s52, {112*1024}\ns_lshl_b32 s57, s42, 11\ns_add_u32 s56, s56, s57\ns_lshl_b32 s57, s50, 10\ns_add_u32 s56, s56, s57")
    issued = [0]
    e(f"s_and_b32 s59, s2, 7\ns_mul_i32 s59, s59, {rot*4}\ns_add_u32 s59, s59, s40")
    NV = 4 - 2 * skip_w - 2 * skip_a
    def loads(s):
        slot = s % D
        e(f"s_lshl_b32 s60, s59, 10\ns_add_u32 s61, s60, s45\ns_add_u32 s62, s60, s46\ns_mul_i32 s60, s59, {16*cfg['wstride']}\ns_add_u32 s63, s60, s47")
        e(f"s_add_u32 s59, s59, 4\ns_sub_u32 s60, s59, {KS}\ns_cselect_b32 s59, s59, s60")
        a0, a1, w0, io = 61, 62, 63, 0
        e(f"s_add_u32 m0, s44, {slot*2048}")
        if not skip_a: e(f"buffer_load_dwordx4 {R('v', BF+8*slot, 4)}, v3, s[20:23], s{a0} offen offset:{io}")
        else: e("s_nop 0")
        if not skip_w: e(f"buffer_load_dwordx4 v4, s[12:15], s{w0} offen lds")
        e(f"s_add_u32 m0, s44, {slot*2048+1024}")
        if mode != "B": e(f"s_add_u32 s48, s{w0}, 8192")
        if not skip_a: e(f"buffer_load_dwordx4 {R('v', BF+8*slot+4, 4)}, v3, s[20:23], s{a1} offen offset:{io}")
        else: e("s_nop 0")
        if not skip_w:
            if mode != "B": e(f"buffer_load_dwordx4 v4, s[12:15], s48 offen lds")
            else: e(f"buffer_load_dwordx4 v7, s[16:19], s{w0} offen lds")
        issued[0] = s + 1
    def areads(s):
        slot = s % D; b = AF + 8 * (s % 2)
        step = 512 if mode != "B" else 256
        for nb in range(2):
            for i in range(2):
                e(f"ds_read_b64_tr_b16 {R('v', b+4*nb+2*i, 2)}, v{8+nb} offset:{slot*2048+i*step}")
    k.stamp()
    for s in range(D): loads(s)
    k.stamp()
    e(f"s_waitcnt vmcnt({NV*(issued[0]-1)})")
    k.stamp()
    areads(0)
    for s in range(KS4):
        if s + 1 < KS4:
            e(f"s_waitcnt vmcnt({NV*(issued[0]-(s+2))})")
            areads(s + 1)
            e("s_waitcnt lgkmcnt(4)")
        else:
            e("s_waitcnt lgkmcnt(0)")
        slot = s % D; b = AF + 8 * (s % 2)
        for nb in range(2):
            for qb in range(2):
                acc = R('v', ACC + 16 * (2*qb+nb), 16)
                e(f"v_mfma_f32_32x32x16_bf16 {acc}, {R('v', b+4*nb, 4)}, {R('v', BF+8*slot+4*qb, 4)}, {acc if s else 0}")
        if s + D < KS4: loads(s + D)
    k.stamp()
    for j in range(1, 4):
        e(f"s_xor_b32 s58, s40, {j}\ns_mul_i32 s58, s58, {DL*2048}\nv_add_u32 v{4+j}, s58, v3")
    e("v_add_u32 v4, s44, v3")
    for j in range(8): e(f"v_lshlrev_b32 v{44+2*j}, 16, v{32+j}\nv_and_b32 v{45+2*j}, 0xffff0000, v{32+j}")
    e("s_waitcnt lgkmcnt(0)\ns_barrier")
    for j in range(1, 4):
        for q in range(4): e(f"ds_write_b128 v{4+j}, {R('v', ACC+16*j+4*q, 4)} offset:{(j-1)*4096+q*1024}")
    e("s_waitcnt lgkmcnt(0)\ns_barrier")
    for j in range(1, 4):
        for q in range(4): e(f"ds_read_b128 {R('v', ACC+16*j+4*q, 4)}, v4 offset:{(j-1)*4096+q*1024}")
    e("s_waitcnt lgkmcnt(8)")
    for j in range(16): e(f"v_add_f32 v{ACC+j}, v{ACC+j}, v{ACC+16+j}")
    e("s_waitcnt lgkmcnt(0)")
    for j in range(16): e(f"v_add_f32 v{ACC+32+j}, v{ACC+32+j}, v{ACC+48+j}")
    for j in range(16): e(f"v_add_f32 v{ACC+j}, v{ACC+j}, v{ACC+32+j}")
    F = list(range(ACC, ACC + 16)); T = list(range(ACC + 16, ACC + 24))
    if mode in "AC":
        for j in range(16): e(f"v_fma_f32 v{F[j]}, v{16+j}, v{F[j]}, v{44+j}")
        for j in range(8): e(f"v_cvt_pk_bf16_f32 v{T[j]}, v{F[2*j]}, v{F[2*j+1]}")
        if mode == "A":
            e(f"buffer_store_dwordx4 {R('v', T[0], 4)}, v3, s[28:31], s56 offen {pol}\nbuffer_store_dwordx4 {R('v', T[4], 4)}, v3, s[28:31], s56 offen offset:1024 {pol}")
            for j in range(8): e(f"v_lshlrev_b32 v{F[2*j]}, 16, v{T[j]}\nv_and_b32 v{F[2*j+1]}, 0xffff0000, v{T[j]}")
            e(f"v_add_f32 v16, v{F[0]}, v{F[1]}\nv_mul_f32 v17, v{F[0]}, v{F[0]}\nv_fmac_f32 v17, v{F[1]}, v{F[1]}")
            for j in range(2, 16): e(f"v_add_f32 v16, v16, v{F[j]}\nv_fmac_f32 v17, v{F[j]}, v{F[j]}")
            e("v_mov_b32 v18, v16\nv_mov_b32 v19, v17\ns_nop 1\nv_permlane32_swap_b32 v16, v18\nv_permlane32_swap_b32 v17, v19")
            e("v_add_f32 v16, v16, v18\nv_add_f32 v17, v17, v19")
            k.srd(24, 8, 9, 2048 * 128, off=RST)
            e("v_lshlrev_b32 v18, 7, v1")
            e("s_lshl_b32 s53, s52, 12\ns_lshl_b32 s54, s42, 4\ns_add_u32 s53, s53, s54\ns_lshl_b32 s54, s50, 3\ns_add_u32 s53, s53, s54")
            e("s_mov_b64 exec, 0xffffffff")
            e("buffer_store_dwordx2 v[16:17], v18, s[24:27], s53 offen")
        else:
            e(f"buffer_store_dwordx4 {R('v', T[0], 4)}, v40, s[32:35], s55 offen\nbuffer_store_dwordx4 {R('v', T[4], 4)}, v40, s[32:35], s55 offen offset:32")
    else:
        G = F[:8]; U = F[8:]; X = list(range(ACC + 32, ACC + 40))
        for j in range(8): e(f"v_mul_f32 v{X[j]}, {f32(-LOG2E)}, v{G[j]}")
        for j in range(8): e(f"v_exp_f32 v{X[j]}, v{X[j]}")
        for j in range(8): e(f"v_add_f32 v{X[j]}, 1.0, v{X[j]}")
        for j in range(8): e(f"v_rcp_f32 v{X[j]}, v{X[j]}")
        for j in range(8): e(f"v_mul_f32 v{G[j]}, v{G[j]}, v{X[j]}")
        rnd_pairs(e, G, T[:4])
        for j in range(8): e(f"v_mul_f32 v{G[j]}, v{G[j]}, v{U[j]}")
        for j in range(4): e(f"v_cvt_pk_bf16_f32 v{T[j]}, v{G[2*j]}, v{G[2*j+1]}")
        e(f"buffer_store_dwordx4 {R('v', T[0], 4)}, v3, s[28:31], s56 offen")
    k.stamp_flush(40, 4)
    k.label(done)
    e("s_endpgm")
    if mode == "A": prep_w13(k, prep)
    return k

def prep_w13(k, lab, done):
    L0 = len(k.L)
    e = k.e
    k.label(lab)
    e(f"s_load_dwordx4 s[4:7], s[0:1], {KA['w1']}")
    e(f"s_load_dwordx2 s[8:9], s[0:1], {KA['ws']}")
    e("v_and_b32 v1, 63, v0\nv_lshrrev_b32 v2, 6, v0\nv_lshlrev_b32 v3, 4, v1\nv_readfirstlane_b32 s40, v2")
    e("s_sub_u32 s41, s2, 256\ns_and_b32 s42, s41, 7\ns_lshr_b32 s43, s41, 5\ns_lshl_b32 s43, s43, 3\ns_add_u32 s42, s42, s43")
    e(f"s_cmp_ge_u32 s42, 28\ns_cbranch_scc1 {done}")
    e("s_bfe_u32 s41, s41, 0x20003\ns_lshl_b32 s42, s42, 2\ns_add_u32 s41, s41, s42")
    e("v_lshrrev_b32 v4, 1, v1\ns_movk_i32 s43, 3584\nv_mul_lo_u32 v4, v4, s43\nv_and_b32 v5, 1, v1\nv_lshl_add_u32 v4, v5, 4, v4")
    e(f"s_mul_i32 s44, s40, {128*3584}\ns_lshl_b32 s45, s41, 5\ns_add_u32 s44, s44, s45")
    e("s_lshl_b32 s46, s40, 13")
    e("v_lshrrev_b32 v6, 5, v1\nv_lshlrev_b32 v6, 5, v6")
    e("s_lshl_b32 s47, s40, 9")
    e("s_waitcnt lgkmcnt(0)")
    k.srd(12, 4, 5, 512 * 3584); k.srd(16, 6, 7, 512 * 3584)
    k.srd(20, 8, 9, 3072 * 4, off=MODF)
    for m in range(2):
        for i in range(4):
            e(f"s_add_u32 m0, s46, {m*4096+i*1024}\ns_add_u32 s48, s44, {32*i*3584}")
            e(f"buffer_load_dwordx4 v4, s[{12+4*m}:{15+4*m}], s48 offen lds")
    e("v_and_b32 v7, 31, v1\nv_lshlrev_b32 v7, 4, v7\nv_lshlrev_b32 v9, 6, v6\nv_add_u32 v7, v7, v9")
    e(f"s_lshl_b32 s49, s40, 10\ns_add_u32 s49, s49, 40960\ns_mov_b32 m0, s49\ns_add_u32 s48, s47, {3*2048}")
    e("buffer_load_dwordx4 v7, s[20:23], s48 offen lds")
    e("v_add_u32 v6, s49, v6")
    k.srd(24, 8, 9, 112 * 32 * 1024, off=W13F)
    k.srd(28, 8, 9, 112 * 256, off=UB)
    e("v_bfe_u32 v10, v1, 2, 2\nv_and_b32 v11, 3, v1\nv_lshrrev_b32 v12, 1, v11\nv_and_b32 v13, 1, v11\nv_lshl_or_b32 v11, v13, 1, v12")
    e("v_lshrrev_b32 v12, 5, v1\nv_lshl_add_u32 v12, v12, 3, v10\nv_bfe_u32 v13, v1, 4, 1")
    e("v_lshlrev_b32 v8, 5, v12\nv_lshl_add_u32 v8, v13, 12, v8\nv_lshl_add_u32 v8, v11, 3, v8\nv_add_u32 v8, s46, v8")
    e("s_lshl_b32 s50, s41, 15\ns_add_u32 s50, s50, s46\ns_add_u32 s51, s50, 4096")
    e("v_mov_b32 v14, 0\nv_mov_b32 v15, 0")
    e(f"v_mov_b32 v10, {f32(-LOG2E)}\nv_mov_b32 v11, {f32(-1/LOG2E)}\nv_cmp_eq_u32 vcc, 0, v13\ns_nop 1\nv_cndmask_b32 v10, v11, v10, vcc")
    e("s_waitcnt vmcnt(0)")
    def mreads(ks):
        for h in range(2):
            e(f"ds_read_b128 {R('v', 64+16*(ks%4)+4*h, 4)}, v6 offset:{512+ks*64+h*16}")
            e(f"ds_read_b128 {R('v', 72+16*(ks%4)+4*h, 4)}, v6 offset:{ks*64+h*16}")
    for ks in range(8):
        for i in range(2): e(f"ds_read_b64_tr_b16 {R('v', 32+4*ks+2*i, 2)}, v8 offset:{ks*512+i*128}")
        if ks < 3: mreads(ks)
    for ks in range(8):
        if ks + 3 < 8: mreads(ks + 3)
        cb = 64 + 16 * (ks % 4); sb = cb + 8; w = 32 + 4 * ks
        for j in range(8): e(f"v_add_f32 v{cb+j}, 1.0, v{cb+j}")
        rnd_pairs(e, list(range(cb, cb + 8)), [16, 17, 18, 19])
        for j in range(4): e(f"v_lshlrev_b32 v{20+2*j}, 16, v{w+j}\nv_and_b32 v{21+2*j}, 0xffff0000, v{w+j}")
        for j in range(8): e(f"v_mul_f32 v{20+j}, v{20+j}, v10")
        for j in range(8): e(f"v_fmac_f32 v15, v{20+j}, v{sb+j}")
        for j in range(8): e(f"v_mul_f32 v{20+j}, v{20+j}, v{cb+j}")
        for j in range(4): e(f"v_cvt_pk_bf16_f32 v{w+j}, v{20+2*j}, v{21+2*j}")
        e(f"buffer_store_dwordx4 {R('v', w, 4)}, v3, s[24:27], s{50+(ks>>2)} offen offset:{(ks%4)*1024}")
        for j in range(4): e(f"v_lshlrev_b32 v{20+2*j}, 16, v{w+j}\nv_and_b32 v{21+2*j}, 0xffff0000, v{w+j}")
        for j in range(8): e(f"v_add_f32 v14, v14, v{20+j}")
    e("s_nop 1\nv_permlane32_swap_b32 v14, v15\nv_add_f32 v14, v14, v15")
    e("v_lshlrev_b32 v16, 2, v0\nds_write_b32 v16, v14 offset:32768")
    e("v_lshlrev_b32 v17, 2, v1")
    e("s_waitcnt lgkmcnt(0)\ns_barrier")
    for i in range(4): e(f"ds_read_b32 v{20+i}, v17 offset:{32768+256*i}")
    e("s_lshl_b32 s50, s41, 8")
    e("v_add_f32 v20, v20, v21\nv_add_f32 v22, v22, v23\nv_add_f32 v20, v20, v22")
    e("buffer_store_dword v20, v17, s[28:31], s50 offen")
    e("s_endpgm")
    k.L[L0:] = autowait(k.L[L0:])
```

```python
from fw import K, R, autowait, resolve_waits
from layout import *
from k_attn import pour

def k_gemmb(P1=2, RA=8, up=2, stamps=False, pol='', qlog=3):
    k = K("gemmb_kernel", (256, 1, 1), 256, lds=131072 + 2048, vgpr=224, agpr=192, sgpr=64)
    e = k.e
    done = k.lab("done")
    ACC = lambda b: 64 + 16 * b
    AFR = lambda n: 128 + 4 * (n % 16)
    UBL = 131072
    e(f"s_cmp_ge_u32 s2, 256\ns_cbranch_scc1 {done}")
    if stamps: k.stamps_on(3)
    k.stamp()
    e(f"s_load_dwordx2 s[8:9], s[0:1], {KA['ws']}")
    e("v_and_b32 v1, 63, v0\nv_lshrrev_b32 v2, 6, v0\nv_lshlrev_b32 v3, 4, v1\nv_readfirstlane_b32 s40, v2")
    nl = 5 - qlog; qg = 4 - qlog
    e(f"s_and_b32 s41, s2, {(1<<qg)-1}\ns_lshl_b32 s41, s41, {qlog}\ns_bfe_u32 s43, s2, {(qlog<<16)|3:#x}\ns_add_u32 s41, s41, s43")
    e(f"s_bfe_u32 s42, s2, {((3-qg)<<16)|qg:#x}\ns_lshl_b32 s42, s42, {nl}\ns_lshr_b32 s43, s2, {3+qlog}\ns_add_u32 s42, s42, s43")
    e("s_lshl_b32 s44, s41, 2\ns_add_u32 s44, s44, s40")
    e("s_lshl_b32 s45, s44, 15")
    e("s_lshl_b32 s46, s40, 13")
    e(f"s_mul_i32 s47, s42, {7*32768}\ns_add_u32 s47, s47, s46")
    e("v_and_b32 v4, 31, v1\nv_lshlrev_b32 v4, 7, v4\nv_lshrrev_b32 v5, 5, v1\nv_lshl_add_u32 v4, v5, 6, v4")
    e("s_lshl_b32 s48, s44, 12")
    e("s_waitcnt lgkmcnt(0)")
    k.srd(12, 8, 9, 112 * 32768, off=W13F)
    k.srd(16, 8, 9, 0x200000, off=X1F)
    def wdma(b, i):
        return [f"s_add_u32 m0, s46, {(b%4)*32768+(i>>2)*4096}", f"s_add_u32 s49, s47, {b*32768+(i>>2)*4096}",
                f"buffer_load_dwordx4 v3, s[12:15], s49 offen offset:{(i%4)*1024} lds ;@w{b}_{i}"]
    def xld(ks):
        return [f"s_add_u32 s50, s45, {(ks>>2)*4096}", f"buffer_load_dwordx4 {R('a', 4*ks, 4)}, v3, s[16:19], s50 offen offset:{(ks%4)*1024} ;@x{ks}"]
    def sub_ks(p): return [8 * w + i for i in (2 * p, 2 * p + 1) for w in range(4)]
    def sub_loads(p):
        r = []; xs = sub_ks(p); ws = [(b, i) for i in (2 * p, 2 * p + 1) for b in range(P1)]
        for n in range(max(8, len(ws))):
            if n < len(ws): r.append(wdma(*ws[n]))
            if n < 8: r.append(xld(xs[n]))
        return r
    if stamps != 2: k.stamp()
    for u in sub_loads(0):
        for l in u: e(l)
    k.srd(20, 8, 9, 2048 * 128, off=RST)
    k.srd(24, 8, 9, 112 * 256, off=UB)
    for j in range(4): e(f"buffer_load_dwordx4 {R('v', 16+4*j, 4)}, v4, s[20:23], s48 offen offset:{16*j}")
    e(f"s_and_b32 s51, s40, 1\ns_lshl_b32 s51, s51, 10\ns_add_u32 m0, s51, {UBL}\ns_mul_i32 s52, s42, 1792\ns_add_u32 s52, s52, s51")
    e("buffer_load_dwordx4 v3, s[24:27], s52 offen lds ;@ub")
    for p in range(1, up):
        for u in sub_loads(p):
            for l in u: e(l)
    k.srd(28, 8, 9, 64 * 112 * 1024, off=HHF)
    e(f"s_mul_i32 s53, s44, {112*1024}\ns_mul_i32 s54, s42, {7*1024}\ns_add_u32 s53, s53, s54\ns_add_u32 s54, s53, 4096")
    e("v_add_u32 v6, 0x10000, v3")
    e(f"v_lshlrev_b32 v7, 4, v5\nv_add_u32 v7, {UBL}, v7")
    prog = []
    for p in range(4):
        for ks in sub_ks(p):
            for b in range(P1): prog.append((b, ks, ("s", p)))
    for b in range(P1, 7):
        for ks in range(32): prog.append((b, ks, ("b", b)))
    N = len(prog)
    phases = []
    for n, (_, _, ph) in enumerate(prog):
        if not phases or phases[-1][0] != ph: phases.append([ph, n])
    def need(ph):
        if ph[0] == "s":
            p = ph[1]
            return [f"w{b}_{i}" for b in range(P1) for i in (2*p, 2*p+1)]
        return [f"w{ph[1]}_{i}" for i in range(8)] + ["ub"]
    def aread(n):
        b, ks, _ = prog[n]; sl = b % 4
        return f"ds_read_b128 {R('a', AFR(n), 4)}, v{3 if sl < 2 else 6} offset:{(sl%2)*32768+ks*1024}"
    stats = []
    for j in range(1, 8): stats += [f"v_add_f32 v16, v16, v{16+2*j}", f"v_add_f32 v17, v17, v{17+2*j}"]
    stats += ["v_mov_b32 v18, v16", "v_mov_b32 v19, v17", "s_nop 1", "v_permlane32_swap_b32 v16, v18", "v_permlane32_swap_b32 v17, v19",
              "v_add_f32 v16, v16, v18", "v_add_f32 v17, v17, v19", f"v_mul_f32 v8, {f32(-1/512)}, v16", f"v_mul_f32 v17, {f32(1/512)}, v17",
              "v_fma_f32 v17, -v8, v8, v17", "v_max_f32 v17, 0, v17", f"v_add_f32 v17, {f32(1e-5)}, v17", "v_rsq_f32 v9, v17"]
    def epi(b):
        a = ACC(b); U = 176 if b % 2 == 0 else 16
        lds = [f"ds_read_b128 {R('v', U+4*j, 4)}, v7 offset:{b*256+(j>>2)*128+(j&3)*32}" for j in range(8)]
        r = []
        for j in range(16): r.append(f"v_fmac_f32 v{a+j}, v8, v{U+j}")
        for j in range(16): r.append(f"v_fma_f32 v{a+j}, v{a+j}, v9, v{U+16+j}")
        for j in range(8): r.append(f"v_exp_f32 v{208+j}, v{a+j}")
        for j in range(8): r.append(f"v_mul_f32 v{a+j}, v{a+j}, v{a+8+j}")
        for j in range(8): r.append(f"v_add_f32 v{208+j}, 1.0, v{208+j}")
        for j in range(8): r.append(f"v_rcp_f32 v{208+j}, v{208+j}")
        for j in range(8): r.append(f"v_mul_f32 v{a+j}, v{a+j}, v{208+j}")
        for j in range(4): r.append(f"v_cvt_pk_bf16_f32 v{216+4*(b%2)+j}, v{a+2*j}, v{a+2*j+1}")
        st = f"buffer_store_dwordx4 {R('v', 216+4*(b%2), 4)}, v3, s[28:31], s{53+(b>>2)} offen offset:{(b%4)*1024} {pol}"
        return lds, r, st
    pre = [[] for _ in range(N)]; post = [[] for _ in range(N)]
    if stamps != 2: k.stamp()
    e("WAITV " + " ".join(need(("s", 0))))
    e("s_barrier")
    k.stamp()
    for n in range(RA): e(aread(n))
    rgap = {}
    for pi, (ph, n0) in enumerate(phases):
        n1 = phases[pi + 1][1] if pi + 1 < len(phases) else N
        latest = n1 - RA - 4 if pi + 1 < len(phases) else N
        cnt = {}
        for m in range(n1 - 1, max(n0, RA) - 1, -1):
            g = min(m - RA, latest)
            while cnt.get(g, 0) == 2: g -= 1
            assert g >= n0 - RA and m - g < 16
            cnt[g] = cnt.get(g, 0) + 1
            rgap.setdefault(g, []).insert(0, m)
    pend = []
    issued = set((b, i) for b in range(P1) for i in range(8))
    for pi, (ph, n0) in enumerate(phases):
        n1 = phases[pi + 1][1] if pi + 1 < len(phases) else N
        nxt = phases[pi + 1][0] if pi + 1 < len(phases) else None
        barn = n1 - RA - 1 if nxt else None
        units = []
        if ph[0] == "s":
            p = ph[1]
            if p + up < 4: units += sub_loads(p + up)
            else:
                cand = [(b, i) for b in range(P1, 7) for i in range(8) if (b, i) not in issued and (b < 4 or (b - 4 < P1 and i // 2 < p))]
                for bi in cand[:14]: units.append(wdma(*bi)); issued.add(bi)
        else:
            cand = [(b, i) for b in range(P1, 7) for i in range(8) if (b, i) not in issued and (b < 4 or b - 4 < ph[1])]
            for bi in cand[:16]: units.append(wdma(*bi)); issued.add(bi)
        for n in range(n0, n1):
            b, ks, _ = prog[n]
            first = all(prog[m][0] != b for m in range(n))
            acc = R('v', ACC(b), 16)
            pre[n].append(f"v_mfma_f32_32x32x16_bf16 {acc}, {R('a', AFR(n), 4)}, {R('a', 4*ks, 4)}, {'0' if first else acc}")
            for m in rgap.get(n, []): pre[n].append(aread(m))
            if n == barn: pre[n] += ["WAITV " + " ".join(need(nxt)) + " | lgkmcnt(0)", "s_barrier"]
        lim = (barn if barn is not None else n1) - n0
        for i, u in enumerate(units): pre[n0 + i * (lim - 1) // len(units)] += u
        gaps = [g for g in range(n0 + 5, n1) if g != barn]
        if pi == 2:
            for g, o in pour(gaps, {g: 12 for g in gaps}, stats).items(): post[g] += o
    assert len(issued) == 56
    barns = {phases[i + 1][1] - RA - 1 for i in range(len(phases) - 1)}
    g0 = 32 * P1 + 4
    gaps = [g for g in range(g0, N) if g not in barns]
    allops = []
    for b in range(6):
        lds, ops, st = epi(b)
        allops += [o + f" ;#{b}" for o in ops] + [st + f" ;#{b}"]
    cap = {g: max(4, 24 - 4 * (len(pre[g]) - 1) - (1 if g % 4 == 3 else 0)) for g in gaps}
    placed = pour(gaps, cap, allops)
    firstg = {}
    for g in gaps:
        for o in placed[g]:
            firstg.setdefault(int(o.split(";#")[1]), g)
        post[g] += placed[g]
    for b in range(6):
        ready = 32 * P1 + 32 * max(0, b - P1 + 1) + 4
        assert firstg[b] >= ready, (b, firstg[b], ready)
        for j, l in enumerate(epi(b)[0]):
            g = firstg[b] - 5 + j // 2
            while g in barns: g -= 1
            pre[g].append(l)
    for n in range(0, N, 4):
        m = min(n + 3, N - 1)
        pre[n].insert(0, f"NEED {R('a', AFR(m), 4)}")
    for n in range(N):
        if n == 32 * P1 or (stamps == 2 and n in [p[1] for p in phases[1:]]): k.stamp()
        for l in pre[n] + post[n]: e(l)
    k.stamp()
    lds, ops, st = epi(6)
    for l in lds: e(l)
    e("s_nop 3")
    for l in ops + [st]: e(l)
    last = {}; out = []
    for l in k.L:
        if l.startswith(("s_add_u32 m0,", "s_add_u32 s49,", "s_add_u32 s50,")):
            d = l.split()[1]
            if last.get(d) == l: continue
            last[d] = l
        out.append(l)
    k.L = autowait(resolve_waits(out))
    k.stamp_flush(40, 4)
    k.label(done)
    e("s_endpgm")
    return k
```

```python
from fw import K, R, autowait
from layout import *
from k_gemm import prep_w13

def k_gemms(mode, D=8, rot=None, stamps=False, pol=''):
    cfg = dict(A=dict(name="gemma_kernel", K=4096, act=OF, w=WOF), C=dict(name="gemmc_kernel", K=1792, act=HHF, w=W2F))[mode]
    KS = cfg["K"] // 16; KS4 = KS // 4
    D = min(D, KS4)
    if rot is None: rot = KS4 // 8
    ng = 256 + (128 if mode == "A" else 0)
    k = K(cfg["name"], (ng, 1, 1), 256, lds=49152, vgpr=128, agpr=16 * D, sgpr=72)
    e = k.e
    ACC = 64
    done = k.lab("done"); prep = k.lab("prep")
    e(f"s_cmp_ge_u32 s2, {ng}\ns_cbranch_scc1 {done}")
    if mode == "A": e(f"s_cmp_ge_u32 s2, 256\ns_cbranch_scc1 {prep}")
    if stamps: k.stamps_on({"A": 2, "C": 4}[mode])
    k.stamp()
    e(f"s_load_dwordx2 s[8:9], s[0:1], {KA['ws']}")
    e(f"s_load_dwordx2 s[10:11], s[0:1], {KA['x'] if mode == 'A' else KA['out']}")
    e("v_and_b32 v1, 63, v0\nv_lshrrev_b32 v2, 6, v0\nv_lshlrev_b32 v3, 4, v1\nv_readfirstlane_b32 s40, v2")
    e("s_and_b32 s41, s2, 7\ns_lshl_b32 s41, s41, 2\ns_bfe_u32 s42, s2, 0x20003\ns_add_u32 s41, s41, s42\ns_lshr_b32 s42, s2, 5")
    e("s_and_b32 s50, s40, 1\ns_lshr_b32 s51, s40, 1")
    e("s_lshl_b32 s52, s41, 1\ns_add_u32 s52, s52, s51")
    e(f"s_mul_i32 s45, s52, {KS*1024}\ns_xor_b32 s46, s52, 1\ns_mul_i32 s46, s46, {KS*1024}")
    e(f"s_mul_i32 s47, s42, {KS*2048}")
    e("s_lshl_b32 s43, s50, 10\nv_add_u32 v4, s43, v3\nv_xor_b32 v5, 1024, v4")
    e(f"s_and_b32 s59, s2, 7\ns_mul_i32 s59, s59, {rot*4}\ns_add_u32 s59, s59, s40")
    e("s_waitcnt lgkmcnt(0)")
    k.srd(12, 8, 9, 8 * KS * 2048, off=cfg["w"])
    k.srd(20, 8, 9, 64 * KS * 1024, off=cfg["act"])
    k.stamp()
    FR = lambda s, j: 16 * (s % D) + 4 * j
    def loads(s):
        e(f"s_lshl_b32 s60, s59, 10\ns_add_u32 s61, s60, s45\ns_add_u32 s62, s60, s46\ns_lshl_b32 s60, s59, 11\ns_add_u32 s63, s60, s47")
        e(f"buffer_load_dwordx4 {R('a', FR(s, 2), 4)}, v3, s[20:23], s61 offen")
        e(f"buffer_load_dwordx4 {R('a', FR(s, 0), 4)}, v4, s[12:15], s63 offen")
        e(f"s_add_u32 s59, s59, 4\ns_sub_u32 s60, s59, {KS}\ns_cselect_b32 s59, s59, s60")
        e(f"buffer_load_dwordx4 {R('a', FR(s, 1), 4)}, v5, s[12:15], s63 offen")
        e(f"buffer_load_dwordx4 {R('a', FR(s, 3), 4)}, v3, s[20:23], s62 offen")
    for s in range(2): loads(s)
    k.srd(24, 8, 9, 3072 * 4, off=MODF)
    k.srd(28, 8, 9, 0x200000, off=X1F)
    k.srd(32, 10, 11, 0x200000)
    ch = 2 if mode == "A" else 5
    e("v_lshrrev_b32 v15, 5, v1\nv_lshlrev_b32 v15, 5, v15")
    e(f"s_lshl_b32 s53, s42, 8\ns_lshl_b32 s54, s50, 7\ns_add_u32 s53, s53, s54\ns_add_u32 s53, s53, {ch*2048}")
    e("v_and_b32 v40, 31, v1\nv_lshlrev_b32 v40, 10, v40\nv_lshrrev_b32 v41, 5, v1\nv_lshl_add_u32 v40, v41, 4, v40")
    e("s_lshl_b32 s55, s52, 15\ns_lshl_b32 s56, s42, 7\ns_add_u32 s55, s55, s56\ns_lshl_b32 s56, s50, 6\ns_add_u32 s55, s55, s56")
    e("s_lshl_b32 s56, s52, 15\ns_lshl_b32 s57, s42, 12\ns_add_u32 s56, s56, s57\ns_lshl_b32 s57, s50, 11\ns_add_u32 s56, s56, s57")
    def epi_loads():
        for j in range(4):
            e(f"buffer_load_dwordx4 v[{16+4*j}:{19+4*j}], v15, s[24:27], s53 offen offset:{(j>>1)*64+(j&1)*16}")
        if mode == "A":
            e("buffer_load_dwordx4 v[32:35], v40, s[32:35], s55 offen\nbuffer_load_dwordx4 v[36:39], v40, s[32:35], s55 offen offset:32")
        else:
            e("buffer_load_dwordx4 v[32:35], v3, s[28:31], s56 offen\nbuffer_load_dwordx4 v[36:39], v3, s[28:31], s56 offen offset:1024")
    for j in range(1, 4):
        e(f"s_xor_b32 s58, s40, {j}\ns_mul_i32 s58, s58, 12288\nv_add_u32 v{8+j}, s58, v3")
    e("s_mul_i32 s58, s40, 12288\nv_add_u32 v8, s58, v3")
    for s in range(2, D): loads(s)
    k.stamp(); k.stamp()
    for s in range(KS4):
        for j, (a, b) in enumerate(((0, 2), (1, 2), (0, 3), (1, 3)) if False else ((0, 2), (1, 2), (1, 3), (0, 3))):
            ai = {(0, 2): 0, (1, 2): 1, (0, 3): 2, (1, 3): 3}[(a, b)]
            acc = R('v', ACC + 16 * ai, 16)
            e(f"v_mfma_f32_32x32x16_bf16 {acc}, {R('a', FR(s, a), 4)}, {R('a', FR(s, b), 4)}, {acc if s else 0}")
        if s + D < KS4: loads(s + D)
        if s + D == KS4: epi_loads()
    k.stamp()
    for j in range(8): e(f"v_lshlrev_b32 v{44+2*j}, 16, v{32+j}\nv_and_b32 v{45+2*j}, 0xffff0000, v{32+j}")
    for j in (1, 3, 2):
        for q in range(4): e(f"ds_write_b128 v{8+j}, {R('v', ACC+16*j+4*q, 4)} offset:{(j-1)*4096+q*1024}")
    e("s_waitcnt lgkmcnt(0)\ns_barrier")
    for j in range(1, 4):
        for q in range(4): e(f"ds_read_b128 {R('v', ACC+16*j+4*q, 4)}, v8 offset:{(j-1)*4096+q*1024}")
    for j in range(16): e(f"v_add_f32 v{ACC+j}, v{ACC+j}, v{ACC+16+j}")
    for j in range(16): e(f"v_add_f32 v{ACC+j}, v{ACC+j}, v{ACC+32+j}")
    for j in range(16): e(f"v_add_f32 v{ACC+j}, v{ACC+j}, v{ACC+48+j}")
    F = list(range(ACC, ACC + 16)); T = list(range(ACC + 16, ACC + 24))
    for j in range(16): e(f"v_fma_f32 v{F[j]}, v{16+j}, v{F[j]}, v{44+j}")
    for j in range(8): e(f"v_cvt_pk_bf16_f32 v{T[j]}, v{F[2*j]}, v{F[2*j+1]}")
    if mode == "A":
        e(f"buffer_store_dwordx4 {R('v', T[0], 4)}, v3, s[28:31], s56 offen {pol}\nbuffer_store_dwordx4 {R('v', T[4], 4)}, v3, s[28:31], s56 offen offset:1024 {pol}")
        for j in range(8): e(f"v_lshlrev_b32 v{F[2*j]}, 16, v{T[j]}\nv_and_b32 v{F[2*j+1]}, 0xffff0000, v{T[j]}")
        e(f"v_add_f32 v16, v{F[0]}, v{F[1]}\nv_mul_f32 v17, v{F[0]}, v{F[0]}\nv_add_f32 v18, v{F[2]}, v{F[3]}\nv_mul_f32 v19, v{F[1]}, v{F[1]}")
        e(f"v_fmac_f32 v17, v{F[2]}, v{F[2]}\nv_fmac_f32 v19, v{F[3]}, v{F[3]}")
        for j in range(4, 16): e(f"v_add_f32 v{16+2*(j&1)}, v{16+2*(j&1)}, v{F[j]}\nv_fmac_f32 v{17+2*(j&1)}, v{F[j]}, v{F[j]}")
        e("v_add_f32 v16, v16, v18\nv_add_f32 v17, v17, v19")
        e("v_mov_b32 v18, v16\nv_mov_b32 v19, v17\ns_nop 1\nv_permlane32_swap_b32 v16, v18\nv_permlane32_swap_b32 v17, v19")
        e("v_add_f32 v16, v16, v18\nv_add_f32 v17, v17, v19")
        k.srd(24, 8, 9, 2048 * 128, off=RST)
        e("v_lshlrev_b32 v18, 7, v1")
        e("s_lshl_b32 s53, s52, 12\ns_lshl_b32 s54, s42, 4\ns_add_u32 s53, s53, s54\ns_lshl_b32 s54, s50, 3\ns_add_u32 s53, s53, s54")
        e("s_mov_b64 exec, 0xffffffff")
        e("buffer_store_dwordx2 v[16:17], v18, s[24:27], s53 offen")
    else:
        e(f"buffer_store_dwordx4 {R('v', T[0], 4)}, v40, s[32:35], s55 offen\nbuffer_store_dwordx4 {R('v', T[4], 4)}, v40, s[32:35], s55 offen offset:32")
    k.L = autowait(k.L)
    k.stamp_flush(40, 4)
    k.label(done)
    e("s_endpgm")
    if mode == "A": prep_w13(k, prep, done)
    return k
```

```python
from fw import K, R
from layout import *

def k_pre(code=True):
    k = K("pre_kernel", (224, 1, 1), 512, lds=16384, vgpr=64, sgpr=40)
    e = k.e
    done = k.lab("done"); ln = k.lab("ln"); pf = k.lab("pf")
    e(f"s_cmp_ge_u32 s2, 224\ns_cbranch_scc1 {done}")
    e(f"s_cmp_ge_u32 s2, 160\ns_cbranch_scc1 {pf}")
    e(f"s_load_dwordx2 s[8:9], s[0:1], {KA['ws']}")
    e(f"s_cmp_ge_u32 s2, 96\ns_cbranch_scc1 {ln}")
    e(f"s_load_dwordx4 s[4:7], s[0:1], {KA['c']}")
    e("s_lshr_b32 s3, s2, 3\ns_mul_i32 s3, s3, 43\ns_lshr_b32 s3, s3, 7")
    e("s_mul_i32 s30, s3, 24\ns_sub_u32 s30, s2, s30")
    e("v_and_b32 v1, 15, v0")
    e("v_lshrrev_b32 v2, 4, v0")
    e("s_mov_b32 s24, 24576")
    e("v_mul_lo_u32 v3, v2, s24")
    e("v_lshl_add_u32 v3, v1, 4, v3")
    e("v_lshlrev_b32 v4, 3, v2")
    e("s_mul_i32 s25, s3, 786432")
    e("s_lshl_b32 s26, s30, 8\ns_add_u32 s25, s25, s26")
    e("s_add_u32 s26, s25, 6144\ns_add_u32 s27, s25, 12288\ns_add_u32 s28, s25, 18432")
    e("s_lshl_b32 s29, s3, 8")
    e("s_waitcnt lgkmcnt(0)")
    k.srd(12, 4, 5, 1024)
    k.srd(16, 6, 7, 512 * 6144)
    e("buffer_load_dwordx2 v[6:7], v4, s[12:15], s29 offen")
    for i in range(4):
        e(f"buffer_load_dwordx4 v[{8+4*i}:{11+4*i}], v3, s[16:19], s{25+i} offen")
    k.srd(20, 8, 9, 3072 * 16, off=MODP)
    e("v_lshlrev_b32 v5, 9, v2\nv_lshl_add_u32 v5, v1, 5, v5")
    e("s_waitcnt vmcnt(4)")
    e("v_lshlrev_b32 v24, 16, v6\nv_and_b32 v25, 0xffff0000, v6\nv_lshlrev_b32 v26, 16, v7\nv_and_b32 v27, 0xffff0000, v7")
    for i in range(4): e(f"v_mul_f32 v{28+i}, {f32(-LOG2E)}, v{24+i}")
    for i in range(4): e(f"v_exp_f32 v{28+i}, v{28+i}")
    for i in range(4): e(f"v_add_f32 v{28+i}, 1.0, v{28+i}")
    for i in range(4): e(f"v_rcp_f32 v{28+i}, v{28+i}")
    for i in range(4): e(f"v_mul_f32 v{24+i}, v{24+i}, v{28+i}")
    e("v_cvt_pk_bf16_f32 v28, v24, v25\nv_cvt_pk_bf16_f32 v29, v26, v27")
    e("v_lshlrev_b32 v24, 16, v28\nv_and_b32 v25, 0xffff0000, v28\nv_lshlrev_b32 v26, 16, v29\nv_and_b32 v27, 0xffff0000, v29")
    for i in range(4):
        e(f"s_waitcnt vmcnt({3-i})")
        for j in range(4):
            w = 8 + 4*i + j
            e(f"v_lshlrev_b32 v40, 16, v{w}\nv_and_b32 v41, 0xffff0000, v{w}")
            if i == 0: e(f"v_mul_f32 v{32+2*j}, v24, v40\nv_mul_f32 v{33+2*j}, v24, v41")
            else: e(f"v_fmac_f32 v{32+2*j}, v{24+i}, v40\nv_fmac_f32 v{33+2*j}, v{24+i}, v41")
    e("ds_write_b128 v5, v[32:35]\nds_write_b128 v5, v[36:39] offset:16")
    e("v_and_b32 v6, 127, v0\nv_lshrrev_b32 v7, 7, v0\nv_lshlrev_b32 v7, 12, v7\nv_lshl_add_u32 v7, v6, 2, v7")
    e("s_waitcnt lgkmcnt(0)\ns_barrier")
    for i in range(8): e(f"ds_read_b32 v{8+i}, v7 offset:{512*i}")
    e("s_waitcnt lgkmcnt(0)")
    for st in (4, 2, 1):
        for i in range(st): e(f"v_add_f32 v{8+i}, v{8+i}, v{8+i+st}")
    e("s_barrier")
    e("v_lshlrev_b32 v7, 2, v0\nds_write_b32 v7, v8")
    e("s_waitcnt lgkmcnt(0)\ns_barrier")
    e("v_cmp_gt_u32 vcc, 128, v0\ns_and_saveexec_b64 s[32:33], vcc")
    e(f"s_cbranch_execz {done}")
    for i in range(4): e(f"ds_read_b32 v{8+i}, v7 offset:{512*i}")
    e("v_lshlrev_b32 v6, 4, v0")
    e("s_lshl_b32 s25, s30, 11\ns_lshl_b32 s26, s3, 2\ns_add_u32 s25, s25, s26")
    e("s_waitcnt lgkmcnt(0)")
    e("v_add_f32 v8, v8, v9\nv_add_f32 v10, v10, v11\nv_add_f32 v8, v8, v10")
    e("buffer_store_dword v8, v6, s[20:23], s25 offen")
    e("s_endpgm")
    k.label(ln)
    e(f"s_load_dwordx2 s[4:5], s[0:1], {KA['x']}")
    e("s_sub_u32 s24, s2, 96\ns_lshl_b32 s24, s24, 15")
    e("v_and_b32 v1, 63, v0\nv_lshrrev_b32 v2, 6, v0")
    e("v_and_b32 v6, 31, v1\nv_lshlrev_b32 v5, 10, v6\nv_lshl_add_u32 v5, v2, 7, v5")
    e("v_lshrrev_b32 v7, 5, v1\nv_lshl_add_u32 v5, v7, 4, v5")
    e("s_waitcnt lgkmcnt(0)")
    k.srd(12, 4, 5, 0x200000)
    for j in range(4): e(f"buffer_load_dwordx4 v[{16+4*j}:{19+4*j}], v5, s[12:15], s24 offen offset:{j*32}")
    k.srd(20, 8, 9, 0x200000, off=XHF)
    e("v_lshlrev_b32 v4, 12, v2\nv_lshl_add_u32 v4, v1, 4, v4")
    e("v_lshlrev_b32 v7, 2, v0\nv_lshlrev_b32 v6, 2, v6")
    for j in range(16):
        if j % 4 == 0: e(f"s_waitcnt vmcnt({3-j//4})")
        e(f"v_lshlrev_b32 v{32+2*j}, 16, v{16+j}\nv_and_b32 v{33+2*j}, 0xffff0000, v{16+j}")
    e("v_add_f32 v8, v32, v33\nv_add_f32 v9, v34, v35\nv_add_f32 v10, v36, v37\nv_add_f32 v11, v38, v39")
    for j in range(40, 64): e(f"v_add_f32 v{8+(j%4)}, v{8+(j%4)}, v{j}")
    e("v_add_f32 v8, v8, v9\nv_add_f32 v10, v10, v11\nv_add_f32 v8, v8, v10")
    e("ds_write_b32 v7, v8")
    e("s_waitcnt lgkmcnt(0)\ns_barrier")
    def red(off):
        for i in range(16): e(f"ds_read_b32 v{16+i}, v6 offset:{off+128*i}")
        e("s_waitcnt lgkmcnt(0)")
        for st in (8, 4, 2, 1):
            for i in range(st): e(f"v_add_f32 v{16+i}, v{16+i}, v{16+i+st}")
    red(0)
    e(f"v_mul_f32 v12, {f32(1/512)}, v16")
    for j in range(32, 64): e(f"v_sub_f32 v{j}, v{j}, v12")
    e("v_mul_f32 v8, v32, v32\nv_mul_f32 v9, v33, v33\nv_mul_f32 v10, v34, v34\nv_mul_f32 v11, v35, v35")
    for j in range(36, 64): e(f"v_fmac_f32 v{8+(j%4)}, v{j}, v{j}")
    e("v_add_f32 v8, v8, v9\nv_add_f32 v10, v10, v11\nv_add_f32 v8, v8, v10")
    e("ds_write_b32 v7, v8 offset:2048")
    e("s_waitcnt lgkmcnt(0)\ns_barrier")
    red(2048)
    e(f"v_mov_b32 v14, {f32(1e-5)}\nv_fmac_f32 v14, {f32(1/512)}, v16\nv_rsq_f32 v14, v14\ns_nop 0")
    for ks in range(4):
        b = 32 + 8*ks
        for j in range(8): e(f"v_mul_f32 v{b+j}, v{b+j}, v14")
        for j in range(4): e(f"v_cvt_pk_f16_f32 v{16+4*ks+j}, v{b+2*j}, v{b+2*j+1}")
        e(f"buffer_store_dwordx4 v[{16+4*ks}:{19+4*ks}], v4, s[20:23], s24 offen offset:{ks*1024}")
    k.label(done)
    e("s_endpgm")
    k.label(pf)
    e(f"s_load_dwordx4 s[4:7], s[0:1], {KA['k']}\ns_load_dwordx2 s[8:9], s[0:1], {KA['wq']}")
    e("s_and_b32 s24, s2, 7\ns_sub_u32 s25, s2, 160\ns_lshr_b32 s25, s25, 3")
    e("v_lshrrev_b32 v1, 3, v0\nv_lshlrev_b32 v1, 13, v1\nv_and_b32 v2, 7, v0\nv_lshl_add_u32 v1, v2, 7, v1")
    e("s_lshl_b32 s26, s25, 19\ns_lshl_b32 s27, s24, 10\ns_add_u32 s26, s26, s27")
    e("v_lshlrev_b32 v2, 6, v0")
    e("s_lshl_b32 s27, s24, 2\ns_lshr_b32 s28, s25, 1\ns_add_u32 s27, s27, s28\ns_lshl_b32 s27, s27, 19")
    e("s_bitcmp1_b32 s25, 0")
    e("s_waitcnt lgkmcnt(0)")
    e("s_cselect_b32 s4, s6, s4\ns_cselect_b32 s5, s7, s5")
    k.srd(12, 8, 9, 512 * 8192); k.srd(16, 4, 5, 0x1000000)
    e("buffer_load_dword v3, v1, s[12:15], s26 offen\nbuffer_load_dword v4, v2, s[16:19], s27 offen")
    if code:
        pc = k.lab("pc")
        e("s_getpc_b64 s[20:21]")
        k.label(pc)
        e(f"s_add_u32 s20, s20, attn_kernel-{pc}\ns_addc_u32 s21, s21, 0")
        e("s_and_b32 s21, s21, 0xffff\ns_mov_b32 s22, 0x10000\ns_mov_b32 s23, 0x20000")
        e("v_lshlrev_b32 v5, 4, v0\ns_lshl_b32 s28, s25, 13")
        e("buffer_load_dword v6, v5, s[20:23], s28 offen")
    e("s_waitcnt vmcnt(0)")
    e("s_endpgm")
    return k
```

```python
KA = dict(x=0, k=8, v=16, wq=24, wo=32, bx=40, w1=48, w3=56, w2=64, c=72, wmod=80, out=88, dbg=96, ws=104)
MODP = 0x0000000
MODF = 0x0020000
UB   = 0x0030000
RST  = 0x0040000
XHF  = 0x0100000
X1F  = 0x0300000
H2F  = 0x0500000
HHF  = 0x0800000
OF   = 0x1000000
W13F = 0x2000000
WOF  = 0x2400000
W2F  = 0x2800000
WS_USED = 0x2A00000
import math
LOG2E = 1.4426950408889634
QSCALE = LOG2E / math.sqrt(128.0)
import struct
def f32(x): return "0x%08x" % struct.unpack("<I", struct.pack("<f", x))[0]
```

```python
import sys
from fw import *
from layout import *
from k_pre import *
from k_gemms import *
from k_attn import *

def make(**kw):
    ks = [k_pre(**kw.get('pre', {})), k_attn(**kw.get('attn', {})), k_gemms("A", **kw.get("A", {}))]
    if not kw.get("partial"):
        from k_gemmb import k_gemmb
        ks += [k_gemmb(**kw.get("B", {})), k_gemms("C", **kw.get("C", {}))]
    return ks

def check(ks):
    bad = 0
    for k in ks:
        pr = check_seq(linearise(k.L), k.name)
        end = next(i for i, l in enumerate(k.L) if l.startswith("s_endpgm"))
        rest = k.L[end+1:]
        pr += check_seq(rest, k.name + "/ool")
        for p in pr[:20]: print(p)
        bad += len(pr)
    return bad

if __name__ == "__main__":
    kw = eval(sys.argv[2]) if len(sys.argv) > 2 else {}
    ks = make(**kw)
    bad = check(ks)
    out = sys.argv[1] if len(sys.argv) > 1 else "adaLN_cond__mha_block_cached__glu_gated_swiglu__prompt.s"
    open(out, "w").write(build_file(ks))
    print("problems:", bad, "wrote", out)
```

```python
from fw import K, R
from layout import *

def k_pre(code=True, pfon=True, kv=True, wait=True):
    NG = 224 if pfon else 160
    k = K("pre_kernel", (NG, 1, 1), 512, lds=16384, vgpr=64, sgpr=40)
    e = k.e
    done = k.lab("done"); ln = k.lab("ln"); pf = k.lab("pf")
    e(f"s_cmp_ge_u32 s2, {NG}\ns_cbranch_scc1 {done}")
    e(f"s_cmp_ge_u32 s2, 160\ns_cbranch_scc1 {pf}")
    e(f"s_load_dwordx2 s[8:9], s[0:1], {KA['ws']}")
    e(f"s_cmp_ge_u32 s2, 96\ns_cbranch_scc1 {ln}")
    e(f"s_load_dwordx4 s[4:7], s[0:1], {KA['c']}")
    e("s_lshr_b32 s3, s2, 3\ns_mul_i32 s3, s3, 43\ns_lshr_b32 s3, s3, 7")
    e("s_mul_i32 s30, s3, 24\ns_sub_u32 s30, s2, s30")
    e("v_and_b32 v1, 15, v0")
    e("v_lshrrev_b32 v2, 4, v0")
    e("s_mov_b32 s24, 24576")
    e("v_mul_lo_u32 v3, v2, s24")
    e("v_lshl_add_u32 v3, v1, 4, v3")
    e("v_lshlrev_b32 v4, 3, v2")
    e("s_mul_i32 s25, s3, 786432")
    e("s_lshl_b32 s26, s30, 8\ns_add_u32 s25, s25, s26")
    e("s_add_u32 s26, s25, 6144\ns_add_u32 s27, s25, 12288\ns_add_u32 s28, s25, 18432")
    e("s_lshl_b32 s29, s3, 8")
    e("s_waitcnt lgkmcnt(0)")
    k.srd(12, 4, 5, 1024)
    k.srd(16, 6, 7, 512 * 6144)
    e("buffer_load_dwordx2 v[6:7], v4, s[12:15], s29 offen")
    for i in range(4):
        e(f"buffer_load_dwordx4 v[{8+4*i}:{11+4*i}], v3, s[16:19], s{25+i} offen")
    k.srd(20, 8, 9, 3072 * 16, off=MODP)
    e("v_lshlrev_b32 v5, 9, v2\nv_lshl_add_u32 v5, v1, 5, v5")
    e("s_waitcnt vmcnt(4)")
    e("v_lshlrev_b32 v24, 16, v6\nv_and_b32 v25, 0xffff0000, v6\nv_lshlrev_b32 v26, 16, v7\nv_and_b32 v27, 0xffff0000, v7")
    for i in range(4): e(f"v_mul_f32 v{28+i}, {f32(-LOG2E)}, v{24+i}")
    for i in range(4): e(f"v_exp_f32 v{28+i}, v{28+i}")
    for i in range(4): e(f"v_add_f32 v{28+i}, 1.0, v{28+i}")
    for i in range(4): e(f"v_rcp_f32 v{28+i}, v{28+i}")
    for i in range(4): e(f"v_mul_f32 v{24+i}, v{24+i}, v{28+i}")
    e("v_cvt_pk_bf16_f32 v28, v24, v25\nv_cvt_pk_bf16_f32 v29, v26, v27")
    e("v_lshlrev_b32 v24, 16, v28\nv_and_b32 v25, 0xffff0000, v28\nv_lshlrev_b32 v26, 16, v29\nv_and_b32 v27, 0xffff0000, v29")
    for i in range(4):
        e(f"s_waitcnt vmcnt({3-i})")
        for j in range(4):
            w = 8 + 4*i + j
            e(f"v_lshlrev_b32 v40, 16, v{w}\nv_and_b32 v41, 0xffff0000, v{w}")
            if i == 0: e(f"v_mul_f32 v{32+2*j}, v24, v40\nv_mul_f32 v{33+2*j}, v24, v41")
            else: e(f"v_fmac_f32 v{32+2*j}, v{24+i}, v40\nv_fmac_f32 v{33+2*j}, v{24+i}, v41")
    e("ds_write_b128 v5, v[32:35]\nds_write_b128 v5, v[36:39] offset:16")
    e("v_and_b32 v6, 127, v0\nv_lshrrev_b32 v7, 7, v0\nv_lshlrev_b32 v7, 12, v7\nv_lshl_add_u32 v7, v6, 2, v7")
    e("s_waitcnt lgkmcnt(0)\ns_barrier")
    for i in range(8): e(f"ds_read_b32 v{8+i}, v7 offset:{512*i}")
    e("s_waitcnt lgkmcnt(0)")
    for st in (4, 2, 1):
        for i in range(st): e(f"v_add_f32 v{8+i}, v{8+i}, v{8+i+st}")
    e("s_barrier")
    e("v_lshlrev_b32 v7, 2, v0\nds_write_b32 v7, v8")
    e("s_waitcnt lgkmcnt(0)\ns_barrier")
    e("v_cmp_gt_u32 vcc, 128, v0\ns_and_saveexec_b64 s[32:33], vcc")
    e(f"s_cbranch_execz {done}")
    for i in range(4): e(f"ds_read_b32 v{8+i}, v7 offset:{512*i}")
    e("v_lshlrev_b32 v6, 4, v0")
    e("s_lshl_b32 s25, s30, 11\ns_lshl_b32 s26, s3, 2\ns_add_u32 s25, s25, s26")
    e("s_waitcnt lgkmcnt(0)")
    e("v_add_f32 v8, v8, v9\nv_add_f32 v10, v10, v11\nv_add_f32 v8, v8, v10")
    e("buffer_store_dword v8, v6, s[20:23], s25 offen")
    e("s_endpgm")
    k.label(ln)
    e(f"s_load_dwordx2 s[4:5], s[0:1], {KA['x']}")
    e("s_sub_u32 s24, s2, 96\ns_lshl_b32 s24, s24, 15")
    e("v_and_b32 v1, 63, v0\nv_lshrrev_b32 v2, 6, v0")
    e("v_and_b32 v6, 31, v1\nv_lshlrev_b32 v5, 10, v6\nv_lshl_add_u32 v5, v2, 7, v5")
    e("v_lshrrev_b32 v7, 5, v1\nv_lshl_add_u32 v5, v7, 4, v5")
    e("s_waitcnt lgkmcnt(0)")
    k.srd(12, 4, 5, 0x200000)
    for j in range(4): e(f"buffer_load_dwordx4 v[{16+4*j}:{19+4*j}], v5, s[12:15], s24 offen offset:{j*32}")
    k.srd(20, 8, 9, 0x200000, off=XHF)
    e("v_lshlrev_b32 v4, 12, v2\nv_lshl_add_u32 v4, v1, 4, v4")
    e("v_lshlrev_b32 v7, 2, v0\nv_lshlrev_b32 v6, 2, v6")
    for j in range(16):
        if j % 4 == 0: e(f"s_waitcnt vmcnt({3-j//4})")
        e(f"v_lshlrev_b32 v{32+2*j}, 16, v{16+j}\nv_and_b32 v{33+2*j}, 0xffff0000, v{16+j}")
    e("v_add_f32 v8, v32, v33\nv_add_f32 v9, v34, v35\nv_add_f32 v10, v36, v37\nv_add_f32 v11, v38, v39")
    for j in range(40, 64): e(f"v_add_f32 v{8+(j%4)}, v{8+(j%4)}, v{j}")
    e("v_add_f32 v8, v8, v9\nv_add_f32 v10, v10, v11\nv_add_f32 v8, v8, v10")
    e("ds_write_b32 v7, v8")
    e("s_waitcnt lgkmcnt(0)\ns_barrier")
    def red(off):
        for i in range(16): e(f"ds_read_b32 v{16+i}, v6 offset:{off+128*i}")
        e("s_waitcnt lgkmcnt(0)")
        for st in (8, 4, 2, 1):
            for i in range(st): e(f"v_add_f32 v{16+i}, v{16+i}, v{16+i+st}")
    red(0)
    e(f"v_mul_f32 v12, {f32(1/512)}, v16")
    for j in range(32, 64): e(f"v_sub_f32 v{j}, v{j}, v12")
    e("v_mul_f32 v8, v32, v32\nv_mul_f32 v9, v33, v33\nv_mul_f32 v10, v34, v34\nv_mul_f32 v11, v35, v35")
    for j in range(36, 64): e(f"v_fmac_f32 v{8+(j%4)}, v{j}, v{j}")
    e("v_add_f32 v8, v8, v9\nv_add_f32 v10, v10, v11\nv_add_f32 v8, v8, v10")
    e("ds_write_b32 v7, v8 offset:2048")
    e("s_waitcnt lgkmcnt(0)\ns_barrier")
    red(2048)
    e(f"v_mov_b32 v14, {f32(1e-5)}\nv_fmac_f32 v14, {f32(1/512)}, v16\nv_rsq_f32 v14, v14\ns_nop 0")
    for ks in range(4):
        b = 32 + 8*ks
        for j in range(8): e(f"v_mul_f32 v{b+j}, v{b+j}, v14")
        for j in range(4): e(f"v_cvt_pk_f16_f32 v{16+4*ks+j}, v{b+2*j}, v{b+2*j+1}")
        e(f"buffer_store_dwordx4 v[{16+4*ks}:{19+4*ks}], v4, s[20:23], s24 offen offset:{ks*1024}")
    k.label(done)
    e("s_endpgm")
    k.label(pf)
    e(f"s_load_dwordx4 s[4:7], s[0:1], {KA['k']}\ns_load_dwordx2 s[8:9], s[0:1], {KA['wq']}")
    e("s_and_b32 s24, s2, 7\ns_sub_u32 s25, s2, 160\ns_lshr_b32 s25, s25, 3")
    e("v_lshrrev_b32 v1, 3, v0\nv_lshlrev_b32 v1, 13, v1\nv_and_b32 v2, 7, v0\nv_lshl_add_u32 v1, v2, 7, v1")
    e("s_lshl_b32 s26, s25, 19\ns_lshl_b32 s27, s24, 10\ns_add_u32 s26, s26, s27")
    e("v_lshlrev_b32 v2, 6, v0")
    e("s_lshl_b32 s27, s24, 2\ns_lshr_b32 s28, s25, 1\ns_add_u32 s27, s27, s28\ns_lshl_b32 s27, s27, 19")
    e("s_bitcmp1_b32 s25, 0")
    e("s_waitcnt lgkmcnt(0)")
    e("s_cselect_b32 s4, s6, s4\ns_cselect_b32 s5, s7, s5")
    k.srd(12, 8, 9, 512 * 8192); k.srd(16, 4, 5, 0x1000000)
    e("buffer_load_dword v3, v1, s[12:15], s26 offen")
    if kv: e("buffer_load_dword v4, v2, s[16:19], s27 offen")
    if code:
        pc = k.lab("pc")
        e("s_getpc_b64 s[20:21]")
        k.label(pc)
        e(f"s_add_u32 s20, s20, attn_kernel-{pc}\ns_addc_u32 s21, s21, 0")
        e("s_and_b32 s21, s21, 0xffff\ns_mov_b32 s22, 0x10000\ns_mov_b32 s23, 0x20000")
        e("v_lshlrev_b32 v5, 4, v0\ns_lshl_b32 s28, s25, 13")
        e("buffer_load_dword v6, v5, s[20:23], s28 offen")
    if wait: e("s_waitcnt vmcnt(0)")
    e("s_endpgm")
    return k
```

```python
from fw import K, R, resolve_waits
from layout import *

BIAS = 96.0
THR = 100.0

def cost(op):
    return 8 if op.startswith(("v_exp", "v_rcp")) else 4

def pour(gaps, cap, ops):
    tot_cap = sum(cap[g] for g in gaps); tot = sum(cost(o) for o in ops)
    out = {g: [] for g in gaps}
    over = tot > tot_cap
    gi = 0; cum_cap = cap[gaps[0]]; acc = 0; used = 0
    for o in ops:
        c = cost(o)
        while gi < len(gaps) - 1 and ((not over and used + c > cap[gaps[gi]]) or acc + c / 2 > cum_cap * tot / tot_cap):
            gi += 1; cum_cap += cap[gaps[gi]]; used = 0
        out[gaps[gi]].append(o); used += c; acc += c
    return out

def k_attn(bias=BIAS, thr=THR, stamps=False, touch=True, up=6, upw=12, kvt=False, pol='', ctouch=True):
    k = K("attn_kernel", (256, 1, 1), 256, lds=163840, vgpr=256, agpr=256, sgpr=72)
    e = k.e
    done = k.lab("done")
    if stamps: k.stamps_on(1)
    stamp = k.stamp
    S = lambda b, qh: 64 + 32 * b + 16 * qh
    P = lambda b, qh: 128 + 16 * b + 8 * qh
    NM = lambda qh: 160 + 16 * qh
    Q = lambda qh, ks: 192 + 32 * qh + 4 * ks
    O = lambda qh, db: 64 * qh + 16 * db
    KF = lambda ks: 128 + 4 * ks
    VF = lambda ks2, db: 160 + 16 * ks2 + 4 * db
    KA_ = lambda ks: 8 + ks
    VA = lambda db: 16 + db
    Lr = lambda qh: 20 + qh
    LT = lambda qh: 22 + qh
    TMP = lambda qh, j: 32 + 8 * qh + (j % 4) * 2
    kslot = lambda j: (j % 8) * 8192
    vslot = lambda j: 65536 + (j % 8) * 8192
    mf = lambda d, a, b, c: f"v_mfma_f32_32x32x16_bf16 {d}, {a}, {b}, {c}"
    ASB = 159744
    wslot = lambda ks: (32768 + (ks % 27) * 4096) if ks % 27 < 8 else (81920 + (ks % 27 - 8) * 4096)

    e(f"s_cmp_ge_u32 s2, 256\ns_cbranch_scc1 {done}")
    stamp()
    e(f"s_load_dwordx2 s[10:11], s[0:1], {KA['ws']}")
    e(f"s_load_dwordx2 s[8:9], s[0:1], {KA['wq']}")
    e(f"s_load_dwordx4 s[4:7], s[0:1], {KA['k']}")
    e("v_and_b32 v1, 63, v0\nv_lshrrev_b32 v2, 6, v0\nv_lshlrev_b32 v24, 5, v0\nv_readfirstlane_b32 s40, v2")
    e("s_and_b32 s41, s2, 7\ns_lshl_b32 s41, s41, 2\ns_bfe_u32 s42, s2, 0x20003\ns_add_u32 s41, s41, s42\ns_lshr_b32 s42, s2, 5")
    e("v_lshlrev_b32 v3, 4, v1")
    e("s_lshl_b32 s43, s40, 11")
    e("v_lshrrev_b32 v26, 4, v1\nv_and_b32 v27, 15, v1")
    e("v_lshlrev_b32 v28, 2, v26\nv_xor_b32 v28, v28, v27\nv_lshlrev_b32 v28, 4, v28\nv_lshl_add_u32 v6, v26, 8, v28\nv_lshl_add_u32 v7, v26, 13, v28")
    e("s_lshl_b32 s46, s42, 3\ns_lshl_b32 s47, s40, 1\ns_add_u32 s46, s46, s47")
    e("s_lshl_b32 s48, s46, 15\ns_add_u32 s49, s48, 0x8000")
    e("s_lshl_b32 s50, s40, 15\ns_lshl_b32 s51, s41, 8\ns_add_u32 s50, s50, s51")
    e("s_lshl_b32 s51, s40, 10")
    e("s_waitcnt lgkmcnt(0)")
    k.srd(32, 10, 11, 3072 * 16, off=MODP)
    e(f"s_movk_i32 s55, 8192")
    e("buffer_load_dwordx4 v[32:35], v24, s[32:35], s55 offen\nbuffer_load_dwordx4 v[36:39], v24, s[32:35], s55 offen offset:16")
    e("buffer_load_dwordx4 v[40:43], v24, s[32:35], 0 offen\nbuffer_load_dwordx4 v[44:47], v24, s[32:35], 0 offen offset:16 ;@as")
    k.srd(20, 8, 9, 512 * 8192)
    k.srd(24, 10, 11, 0x200000, off=XHF)
    XR = lambda ks, qh: 64 + (8 * ks + 4 * qh) % 192
    def w_load(ks):
        return [f"s_add_u32 m0, s51, {wslot(ks)}", "s_add_u32 s50, s50, 0x20000", f"buffer_load_dwordx4 v7, s[20:23], s50 offen lds ;@ks{ks}"]
    def x_load(ks):
        r = [f"buffer_load_dwordx4 {R('v', XR(ks, qh), 4)}, v3, s[24:27], s{48+qh} offen offset:{(ks%4)*1024} ;@ks{ks}" for qh in range(2)]
        if ks % 4 == 3: r += ["s_add_u32 s48, s48, 4096", "s_add_u32 s49, s49, 4096"]
        return r
    e("s_sub_u32 s50, s50, 0x20000")
    for ks in range(4):
        for l in w_load(ks) + x_load(ks): e(l)
    stamp()
    e("s_and_b32 s44, s40, 1\ns_lshl_b32 s44, s44, 3")
    e("v_add_u32 v28, s44, v26\nv_xor_b32 v28, v28, v27\nv_lshlrev_b32 v28, 4, v28\nv_lshl_add_u32 v4, v26, 8, v28\nv_xor_b32 v5, 64, v4")
    e("s_lshl_b32 s45, s41, 19")
    e("s_add_u32 s12, s4, s45\ns_addc_u32 s13, s5, 0\ns_and_b32 s13, s13, 0xffff\ns_mov_b32 s14, 0x80000\ns_mov_b32 s15, 0x20000")
    e("s_add_u32 s16, s6, s45\ns_addc_u32 s17, s7, 0\ns_and_b32 s17, s17, 0xffff\ns_mov_b32 s18, 0x80000\ns_mov_b32 s19, 0x20000")
    e("s_mov_b32 s52, s43\ns_mov_b32 s53, s43")
    e(f"s_load_dwordx2 s[4:5], s[0:1], {KA['wo']}\ns_load_dwordx2 s[6:7], s[0:1], {KA['w2']}")
    def k_dma(j):
        return [f"s_add_u32 m0, s43, {kslot(j)}", "s_nop 0", "buffer_load_dwordx4 v4, s[12:15], s52 offen lds",
                f"buffer_load_dwordx4 v5, s[12:15], s52 offen offset:1024 lds ;@k{j}", "s_add_u32 s52, s52, 8192"]
    def v_dma(j):
        return [f"s_add_u32 m0, s43, {vslot(j)}", "s_nop 0", "buffer_load_dwordx4 v6, s[16:19], s53 offen lds",
                f"buffer_load_dwordx4 v6, s[16:19], s53 offen offset:1024 lds ;@v{j}", "s_add_u32 s53, s53, 8192"]
    def wait_for(tags, extra=""):
        return "WAITV " + " ".join(f"{t[0]}{t[1]}" if t[0] != "as" else "as" for t in tags) + (" | " + extra if extra else "")
    for ks in range(4, max(up, upw)):
        if ks < upw:
            for l in w_load(ks): e(l)
        if ks < up:
            for l in x_load(ks): e(l)
    nxt_x = [up]; nxt_w = [upw]
    nomodf = k.lab("nomodf")
    e(f"s_cmp_ge_u32 s2, 4\ns_cbranch_scc1 {nomodf}")
    e("s_add_u32 s55, s2, 2\ns_lshl_b32 s56, s55, 11\ns_lshl_b32 s55, s55, 13")
    e("buffer_load_dwordx4 v[48:51], v24, s[32:35], s55 offen ;@-\nbuffer_load_dwordx4 v[52:55], v24, s[32:35], s55 offen offset:16 ;@-")
    k.srd(36, 10, 11, 3072 * 4, off=MODF)
    e("v_lshlrev_b32 v25, 3, v0")
    e("s_waitcnt vmcnt(0)")
    e("v_add_f32 v48, v48, v49\nv_add_f32 v50, v50, v51\nv_add_f32 v52, v52, v53\nv_add_f32 v54, v54, v55\nv_add_f32 v48, v48, v50\nv_add_f32 v49, v52, v54")
    e("v_cvt_pk_bf16_f32 v48, v48, v49\nv_and_b32 v49, 0xffff0000, v48\nv_lshlrev_b32 v48, 16, v48")
    e("buffer_store_dwordx2 v[48:49], v25, s[36:39], s56 offen ;@-")
    e("s_waitcnt vmcnt(0)")
    k.label(nomodf)
    e(f"s_load_dwordx4 s[36:39], s[0:1], {KA['w1']}")
    e("v_and_b32 v26, 0x13, v1\nv_bfe_u32 v27, v1, 2, 1\nv_lshl_or_b32 v26, v27, 3, v26\nv_bfe_u32 v27, v1, 3, 1\nv_lshl_or_b32 v26, v27, 2, v26")
    e("v_and_b32 v27, 15, v26\nv_lshrrev_b32 v28, 5, v1\nv_xor_b32 v27, v27, v28")
    e("v_lshlrev_b32 v27, 4, v27\nv_lshl_add_u32 v8, v26, 8, v27")
    for ks in range(1, 8): e(f"v_xor_b32 v{KA_(ks)}, {ks*32}, v8")
    e("v_bfe_u32 v26, v1, 2, 2\nv_and_b32 v27, 3, v1\nv_lshrrev_b32 v28, 1, v27\nv_and_b32 v27, 1, v27\nv_lshl_or_b32 v27, v27, 1, v28")
    e("v_lshrrev_b32 v28, 5, v1\nv_lshl_add_u32 v28, v28, 3, v26\nv_lshlrev_b32 v16, 8, v28\nv_lshl_add_u32 v16, v26, 6, v16")
    e("v_bfe_u32 v28, v1, 4, 1\nv_lshl_add_u32 v16, v28, 5, v16\nv_lshl_add_u32 v16, v27, 3, v16")
    for db in range(1, 4): e(f"v_xor_b32 v{VA(db)}, {db*64}, v16")
    for db in range(4): e(f"v_add_u32 v{20+db}, 0x8000, v{VA(db)}")
    for db in range(4): e(f"v_add_u32 v{VA(db)}, 0x10000, v{VA(db)}")
    e(f"v_lshrrev_b32 v2, 5, v1\nv_lshlrev_b32 v2, 5, v2\nv_add_u32 v2, {ASB}, v2")
    e(f"v_lshlrev_b32 v25, 3, v0\nv_add_u32 v25, {ASB}, v25")
    k.srd(28, 10, 11, 0x1000000, off=OF)
    e(f"s_mov_b32 s54, {f32(2.0**thr)}")
    e(wait_for({("as", 0)}))
    for b in (32, 36, 40, 44): e(f"v_add_f32 v{b}, v{b}, v{b+1}\nv_add_f32 v{b+2}, v{b+2}, v{b+3}")
    for b in (32, 36, 40, 44): e(f"v_add_f32 v{b}, v{b}, v{b+2}")
    e("v_cvt_pk_bf16_f32 v32, v32, v36\nv_cvt_pk_bf16_f32 v40, v40, v44")
    e("v_and_b32 v33, 0xffff0000, v32\nv_lshlrev_b32 v32, 16, v32\nv_and_b32 v35, 0xffff0000, v40\nv_lshlrev_b32 v34, 16, v40")
    e("v_add_f32 v32, 1.0, v32\nv_add_f32 v33, 1.0, v33\nv_cvt_pk_bf16_f32 v32, v32, v33")
    e("v_and_b32 v33, 0xffff0000, v32\nv_lshlrev_b32 v32, 16, v32")
    for r in (32, 33, 34, 35): e(f"v_mul_f32 v{r}, {f32(QSCALE)}, v{r}")
    e(f"ds_write_b64 v25, v[32:33]\nds_write_b64 v25, v[34:35] offset:2048")
    WF = lambda ks, db: 128 + 16 * (ks % 2) + 4 * db
    AS = lambda ks: 32 + 16 * (ks % 2)
    wbase = [32768]
    def wreads(ks):
        r = []
        a = wslot(ks)
        if not (wbase[0] <= a and a + 4096 <= wbase[0] + 65536):
            wbase[0] = a
            for db in range(4): r.append(f"v_add_u32 v{20+db}, {(a-65536) & 0xffffffff:#x}, v{VA(db)}")
        r += [f"ds_read_b64_tr_b16 {R('a', WF(ks, db)+2*i, 2)}, v{20+db} offset:{a-wbase[0]+i*1024}" for db in range(4) for i in range(2)]
        return r
    def asreads(ks):
        return [f"ds_read_b128 {R('v', AS(ks)+4*j, 4)}, v2 offset:{(j>>1)*2048+ks*64+(j&1)*16}" for j in range(4)]
    def modulate(ks):
        r = []
        for qh in range(2):
            for j in range(4):
                x = XR(ks, qh) + j; t = 24 + 2 * j
                for h in range(2):
                    r.append(f"v_fma_mix_f32 v{t+h}, v{x}, v{AS(ks)+2*j+h}, v{AS(ks)+8+2*j+h} op_sel:[{h},0,0] op_sel_hi:[1,0,0]")
            for j in range(4):
                r.append(f"v_cvt_pk_bf16_f32 v{XR(ks, qh)+j}, v{24+2*j}, v{25+2*j}")
        return r
    e(wait_for({("ks", 1)}, "lgkmcnt(0)"))
    e("s_barrier")
    stamp()
    for l in asreads(0) + wreads(0) + asreads(1): e(l)
    e("s_waitcnt lgkmcnt(12)")
    for l in modulate(0): e(l)
    for ks in range(32):
        e("s_waitcnt lgkmcnt(0)")
        pre = [[] for _ in range(8)]
        nv = []
        if ks + 1 < 32:
            wr = wreads(ks + 1)
            nv = [l for l in wr if l.startswith("v_")]; wr = [l for l in wr if not l.startswith("v_")]
        else: wr = []
        ar = asreads(ks + 2) if ks + 2 < 32 else []
        bw = wait_for({("ks", ks + 3)} | ({("k", 0), ("k", 1)} if ks == 28 else set())) if (ks % 2 == 0 and ks + 2 < 32) else None
        ld = []
        for _ in range(2):
            if nxt_w[0] < 32 and nxt_w[0] <= ks + 22:
                ld += w_load(nxt_w[0]); nxt_w[0] += 1
            if nxt_x[0] < 32 and nxt_x[0] <= ks + 18:
                ld += x_load(nxt_x[0]); nxt_x[0] += 1
        if ks == 14: ld += k_dma(0)
        if ks == 15: ld += k_dma(1)
        if ks == 16: ld += v_dma(0)
        if ks == 17: ld += k_dma(2)
        if ks == 18: ld += v_dma(1)
        if ks == 19: ld += k_dma(3)
        even = ks % 2 == 0
        if even and ks + 2 < 32:
            pre[0] += [bw, "s_barrier"]
        pre[0] += nv
        mods = modulate(ks + 1) if ks + 1 < 32 else []
        order = [(0, db) for db in range(4)] + [(1, db) for db in range(4)] if ks == 31 else [(qh, db) for db in range(4) for qh in range(2)]
        lds_ops = wr + ar
        for i, l in enumerate(lds_ops): pre[1 + i * 6 // max(len(lds_ops), 1)].append(l)
        for i, l in enumerate(ld): pre[1 + i * 7 // len(ld)].append(l)
        cap = [8 if (g == 0 and even) else 24 for g in range(8)]
        post = pour(list(range(8)), cap, mods) if mods else {g: [] for g in range(8)}
        for g, (qh, db) in enumerate(order):
            acc = R('a', O(qh, db), 16)
            e(mf(acc, R('a', WF(ks, db), 4), R('v', XR(ks, qh), 4), acc if ks else "0"))
            for l in pre[g] + post[g]: e(l)
    stamp()
    def kreads(j): return [f"ds_read_b128 {R('a', KF(ks), 4)}, v{KA_(ks)} offset:{kslot(j)}" for ks in range(8)]
    def vreads(j): return [f"ds_read_b64_tr_b16 {R('a', VF(ks2, db)+2*i, 2)}, v{VA(db)} offset:{vslot(j)-65536+(16*ks2+4*i)*256}"
                           for ks2 in range(2) for db in range(4) for i in range(2)]
    def qcvt(qh):
        r = []
        for db in range(4):
            for h in range(2):
                for j in range(8): r.append(f"v_accvgpr_read_b32 v{32+8*h+j}, a{O(qh, db)+8*h+j}")
                for j in range(4): r.append(f"v_cvt_pk_bf16_f32 v{Q(qh, 2*db+h)+j}, v{32+8*h+2*j}, v{33+8*h+2*j}")
        return r
    def rowmax(b, qh, dst, tmp):
        s = S(b, qh); r = []
        r.append(f"v_max3_f32 v{dst}, v{s}, v{s+1}, v{s+2}")
        r.append(f"v_max3_f32 v{tmp}, v{s+3}, v{s+4}, v{s+5}")
        for j in range(6, 14, 4):
            r.append(f"v_max3_f32 v{dst}, v{dst}, v{s+j}, v{s+j+1}")
            r.append(f"v_max3_f32 v{tmp}, v{tmp}, v{s+j+2}, v{s+j+3}")
        r.append(f"v_max3_f32 v{dst}, v{dst}, v{s+14}, v{s+15}")
        r.append(f"v_max_f32 v{dst}, v{dst}, v{tmp}")
        r.append(f"v_mov_b32 v{tmp}, v{dst}")
        r.append("s_nop 1")
        r.append(f"v_permlane32_swap_b32 v{dst}, v{tmp}")
        r.append(f"v_max_f32 v{dst}, v{dst}, v{tmp}")
        return r
    def softmax(b, qh):
        seq = []; pend = None
        for j in range(8):
            r = S(b, qh) + 2 * j; t = TMP(qh, j)
            seq.append(f"v_exp_f32 v{t}, v{r}")
            if pend: seq += pend[:1]
            seq.append(f"v_exp_f32 v{t+1}, v{r+1}")
            if pend: seq += pend[1:]
            if j == 0: pend = [f"v_add_f32 v{LT(qh)}, v{t}, v{t+1}"]
            else: pend = [f"v_add_f32 v{LT(qh)}, v{LT(qh)}, v{t}", f"v_add_f32 v{LT(qh)}, v{LT(qh)}, v{t+1}"]
            pend.append(f"v_cvt_pk_bf16_f32 v{P(b, qh)+j}, v{t}, v{t+1}")
        return seq + pend
    def init_nm(qh):
        d, t = 26 + 2 * qh, 27 + 2 * qh
        r = rowmax(0, qh, d, t) + [f"v_sub_f32 v{d}, {f32(-bias)}, v{d}"]
        r += [f"v_mov_b32 v{NM(qh)+j}, v{d}" for j in range(16)]
        r += [f"v_add_f32 v{S(0, qh)+j}, v{S(0, qh)+j}, v{d}" for j in range(16)]
        r += [f"v_mov_b32 v{Lr(qh)}, 0"]
        return r
    for l in kreads(0): e(l)
    for l in qcvt(0): e(l)
    e("s_waitcnt lgkmcnt(0)")
    q1 = pour(list(range(8)), [24] * 8, qcvt(1))
    for ks in range(8):
        s = R('v', S(0, 0), 16)
        e(mf(s, R('a', KF(ks), 4), R('v', Q(0, ks), 4), s if ks else "0"))
        for l in q1[ks]: e(l)
    e("s_nop 0")
    kr = kreads(1)
    i0 = pour(list(range(3, 8)), [24] * 8, init_nm(0))
    for ks in range(8):
        s = R('v', S(0, 1), 16)
        e(mf(s, R('a', KF(ks), 4), R('v', Q(1, ks), 4), s if ks else "0"))
        if ks > 0: e(kr[ks - 1])
        if ks in (0, 1, 2): e("s_nop 2")
        for l in i0.get(ks, []): e(l)
    e(kr[7])
    for l in softmax(0, 0): e(l)
    for l in init_nm(1): e(l)
    e(wait_for({("k", 2), ("v", 0)}, "lgkmcnt(0)"))
    e("s_barrier")
    for l in v_dma(2) + k_dma(4): e(l)
    kn = [5]; vn = [3]
    stamp()

    slow_blocks = []
    def iteration(t, first=False, tail=None, loopctl=None, exact=False, extra=()):
        cur, nxt = t % 2, 1 - t % 2
        has_qk = tail != 63
        mfs = []
        if has_qk:
            for qh in range(2):
                for ks in range(8):
                    s = R('v', S(nxt, qh), 16)
                    mfs.append(mf(s, R('a', KF(ks), 4), R('v', Q(qh, ks), 4), s if ks else R('v', NM(qh), 16)))
        else:
            mfs += [None] * 16
        for qh in range(2):
            for ks2 in range(2):
                for db in range(4):
                    o = R('a', O(qh, db), 16)
                    mfs.append(mf(o, R('a', VF(ks2, db), 4), R('v', P(cur, qh) + 4 * ks2, 4), "0" if (first and ks2 == 0) else o))
        pre = [[] for _ in range(32)]; post = [[] for _ in range(32)]
        vr = vreads(t)
        pre[0] += vr[0:2]; pre[1] += vr[2:4]
        for g in range(2, 14): pre[g].append(vr[g + 2])
        pre[15].append("s_waitcnt lgkmcnt(0)")
        if tail is None or tail < 62:
            for g, l in zip((16, 19, 21, 22, 24, 26, 27, 28), kreads(t + 2)): pre[g].append(l)
        if tail is None:
            if t < 4:
                pre[2].insert(0, f"s_add_u32 m0, s43, {vslot(vn[0])}")
                pre[3].append("buffer_load_dwordx4 v6, s[16:19], s53 offen lds")
                pre[5].append(f"buffer_load_dwordx4 v6, s[16:19], s53 offen offset:1024 lds ;@v{vn[0]}")
                pre[6].append("s_add_u32 s53, s53, 8192")
                pre[8].insert(0, f"s_add_u32 m0, s43, {kslot(kn[0])}")
                pre[9].append("buffer_load_dwordx4 v4, s[12:15], s52 offen lds")
                pre[11].append(f"buffer_load_dwordx4 v5, s[12:15], s52 offen offset:1024 lds ;@k{kn[0]}")
                pre[12].append("s_add_u32 s52, s52, 8192")
                kn[0] += 1; vn[0] += 1
            else: assert kn[0] % 8 == (t + 9) % 8 and vn[0] % 8 == (t + 7) % 8
            pre[17].append(f"s_add_u32 m0, s43, {kslot(kn[0])}")
            pre[18].append("buffer_load_dwordx4 v4, s[12:15], s52 offen lds")
            pre[20].append(f"buffer_load_dwordx4 v5, s[12:15], s52 offen offset:1024 lds ;@k{kn[0]}")
            pre[22].insert(0, f"s_add_u32 m0, s43, {vslot(vn[0])}")
            pre[23].append("buffer_load_dwordx4 v6, s[16:19], s53 offen lds")
            pre[25].append(f"buffer_load_dwordx4 v6, s[16:19], s53 offen offset:1024 lds ;@v{vn[0]}")
            pre[21].append("s_add_u32 s52, s52, 8192")
            pre[26].append("s_add_u32 s53, s53, 8192")
            kn[0] += 1; vn[0] += 1
            PR = (20, 22, 24, 26, 32, 34, 8)
            if t == 5:
                for i in range(2): pre[(17, 20)[i]].append(f"ds_read_b64_tr_b16 {R('a', 192+2*i, 2)}, v25 offset:{i*256}")
            if t == 6:
                pre[14].append("buffer_store_dwordx4 a[192:195], v3, s[64:67], s21 offen")
                pre[29].append("buffer_load_dword a255, v0, s[68:71], s58 offen")
            if t == 7:
                pre[13].insert(0, "s_mov_b32 m0, s51")
                pre[14].append("buffer_load_dwordx4 v24, s[60:63], s20 offen lds")
                pre[29] += ["s_mov_b64 s[68:69], s[38:39]", "s_mov_b32 s70, s59"]

            if t == 8:
                pre[14] += [f"s_mov_b64 s[{PR[i]}:{PR[i]+1}], s[{PR[i+1]}:{PR[i+1]+1}]" for i in range(3)]
                pre[29] += [f"s_mov_b64 s[{PR[i]}:{PR[i]+1}], s[{PR[i+1]}:{PR[i+1]+1}]" for i in range(3, 5)]
            if t == 9:
                pre[14] += ["s_mov_b64 s[34:35], s[8:9]", "s_mov_b32 s59, 0"]
                pre[29] += ["s_cmp_eq_u32 s56, 4", "s_cselect_b64 s[60:61], s[6:7], s[60:61]"]
            if t == 10:
                pre[14] += ["s_cmp_eq_u32 s56, 4", "s_cselect_b32 s62, s57, s62"]
            if t == 11 and ctouch:
                pre[14] += ["s_cmp_eq_u32 s56, 3", "s_cselect_b64 s[68:69], s[4:5], s[68:69]"]
                pre[29] += ["s_cmp_eq_u32 s56, 3", "s_cselect_b32 s70, code_end-gemma_kernel, s70"]
            if t == 12 and ctouch:
                pre[14] += ["s_cmp_eq_u32 s56, 3", "s_cselect_b32 s58, s55, s58"]
            pre[30].append(wait_for({("k", t + 3), ("v", t + 1)}, "lgkmcnt(0)") if exact else "s_waitcnt vmcnt(24) lgkmcnt(0)")
        elif tail == 61: pre[30].append("s_waitcnt vmcnt(20) lgkmcnt(0)")
        elif tail == 62: pre[30].append("s_waitcnt vmcnt(16) lgkmcnt(0)")
        if loopctl: pre[29] += ["s_sub_u32 s56, s56, 1", "s_cmp_lg_u32 s56, 0"]
        if tail != 63: pre[31].append("s_barrier")
        if loopctl: pre[31].append(f"s_cbranch_scc1 {loopctl}")
        cap = [24 - 4 * len(pre[g]) for g in range(32)]
        for g, ops in pour(list(range(0, 15)), cap, softmax(cur, 1)).items(): post[g] += ops
        if not first:
            sl = k.lab("slow"); ret = k.lab("ret")
            post[15] += [f"v_max_f32 v26, v{LT(0)}, v{LT(1)}", "v_cmp_nge_f32 vcc, s54, v26", f"s_cbranch_vccnz {sl}", ret + ":"]
            slow_blocks.append((sl, ret, cur, has_qk))
        ops = [f"v_add_f32 v{Lr(0)}, v{Lr(0)}, v{LT(0)}", f"v_add_f32 v{Lr(1)}, v{Lr(1)}, v{LT(1)}"]
        if has_qk: ops += softmax(nxt, 0)
        for i, l in enumerate(extra): ops.insert(2 + i * 3, l.replace("|", "\n"))
        for g, o in pour(list(range(16, 31)), cap, ops).items(): post[g] += o
        for g in range(32):
            if mfs[g]: e(mfs[g])
            for l in pre[g] + post[g]: e(l)
    iteration(0, first=True, exact=True)
    pcl = k.lab("pc")
    setup = f"""s_mov_b32 s60, s4
s_and_b32 s61, s5, 0xffff
s_mov_b32 s62, {4096*1024}
s_mov_b32 s63, 0x20000
s_and_b32 s7, s7, 0xffff
s_mov_b32 s57, {1792*1024}
s_add_u32 s64, s10, {WOF:#x}|s_addc_u32 s65, s11, 0
s_and_b32 s65, s65, 0xffff
s_mov_b32 s66, {W2F-WOF+8*112*2048:#x}
s_mov_b32 s67, 0x20000
s_mov_b32 s68, s36
s_and_b32 s69, s37, 0xffff
s_and_b32 s39, s39, 0xffff
s_mov_b32 s70, {512*3584}
s_mov_b32 s71, 0x20000
s_mov_b32 s59, {512*3584}
s_lshl_b32 s20, s2, 14
s_lshl_b32 s49, s40, 8
s_add_u32 s20, s20, s49
s_add_u32 s22, s20, 64
s_add_u32 s24, s20, 128
s_add_u32 s26, s20, 192
s_mov_b32 s21, 0x7fff0000
s_lshl_b32 s23, s40, 20
s_lshl_b32 s49, s2, 11
s_add_u32 s23, s23, s49
s_add_u32 s25, s23, 1024
s_add_u32 s27, s23, 0x80000
s_add_u32 s33, s27, 1024
s_lshl_b32 s48, s2, 2
s_add_u32 s48, s48, s40
s_lshr_b32 s49, s48, 3
s_and_b32 s50, s48, 7
s_lshl_b32 s32, s49, 14
s_lshl_b32 s55, s50, 7
s_add_u32 s32, s32, s55
s_add_u32 s34, s32, 64
s_mov_b32 s8, 0x7fff0000
s_mul_i32 s35, s50, 112
s_add_u32 s35, s35, s49
s_lshl_b32 s35, s35, 11
s_add_u32 s35, s35, {W2F-WOF:#x}
s_cmp_lt_u32 s48, 896|s_cselect_b32 s35, s35, 0x7fff0000
s_add_u32 s9, s35, 1024
s_mul_i32 s58, s48, 1792
s_lshl_b32 s51, s40, 10
s_add_u32 s51, s51, 131072
v_lshrrev_b32 v24, 2, v1
v_and_b32 v25, 3, v1
v_lshlrev_b32 v24, 10, v24
v_lshl_add_u32 v24, v25, 4, v24
v_bfe_u32 v30, v16, 8, 4
v_and_b32 v25, 63, v16
v_lshl_add_u32 v25, v30, 6, v25
v_add_u32 v25, s51, v25
v_lshlrev_b32 v0, 5, v1
s_lshr_b32 s55, s48, 5
s_and_b32 s49, s48, 3
s_lshl_b32 s55, s55, 2
s_add_u32 s55, s55, s49
s_and_b32 s55, s55, 31
s_lshl_b32 s55, s55, 11
s_getpc_b64 s[4:5]|{pcl}:|s_add_u32 s4, s4, gemma_kernel-{pcl}|s_addc_u32 s5, s5, 0
s_and_b32 s5, s5, 0xffff""".split("\n")
    n4 = (len(setup) + 3) // 4
    for t in range(1, 5): iteration(t, exact=True, extra=setup[(t-1)*n4:t*n4])
    e("s_mov_b32 s56, 7")
    loop = k.lab("loop")
    k.label(loop)
    if stamps == 2:
        e("s_memtime s[86:87]\ns_waitcnt lgkmcnt(0)")
        for r in range(95, 88, -1): e(f"s_mov_b32 s{r}, s{r-1}")
        e("s_mov_b32 s88, s86")
    for t in range(5, 13): iteration(t, loopctl=loop if t == 12 else None)
    stamp()
    for t in (61, 62, 63): iteration(t, tail=t)
    stamp()
    for qh in range(2):
        e(f"v_mov_b32 v26, v{Lr(qh)}\ns_nop 1\nv_permlane32_swap_b32 v{Lr(qh)}, v26\nv_add_f32 v26, v26, v{Lr(qh)}\nv_rcp_f32 v{Lr(qh)}, v26")
    e("s_lshl_b32 s48, s46, 18\ns_lshl_b32 s49, s41, 13\ns_add_u32 s48, s48, s49\ns_add_u32 s49, s48, 0x40000")
    e("v_add_u32 v27, 4096, v3")
    for qh in range(2):
        for db in range(4):
            b = 64 + 32 * ((4*qh+db) % 4)
            for j in range(16): e(f"v_accvgpr_read_b32 v{b+j}, a{O(qh, db)+j}")
            for j in range(16): e(f"v_mul_f32 v{b+j}, v{b+j}, v{Lr(qh)}")
            for j in range(8): e(f"v_cvt_pk_bf16_f32 v{b+16+j}, v{b+2*j}, v{b+2*j+1}")
            for h2 in range(2):
                f = 2 * db + h2
                e(f"buffer_store_dwordx4 {R('v', b+16+4*h2, 4)}, v{3 if f < 4 else 27}, s[28:31], s{48+qh} offen offset:{(f%4)*1024} {pol}")
    if stamps == 2:
        e("s_mov_b32 s72, s80")
        for i in range(7): e(f"s_mov_b32 s{74+2*i}, s{94-i}") if i < 4 else None
        k.extra = [90, 89, 88]
    k.stamp_flush(40, 4)
    k.L = resolve_waits(k.L)
    k.label(done)
    e("s_endpgm")
    for sl, ret, cur, has_qk in slow_blocks:
        nxt = 1 - cur
        k.label(sl)
        if stamps: e("s_add_u32 s100, s100, 1")
        e("s_nop 15")
        for qh in range(2):
            for l in rowmax(cur, qh, 26, 27): e(l)
            e(f"v_add_f32 v26, {f32(bias)}, v26\nv_max_f32 v26, 0, v26")
            e("v_mul_f32 v27, -0.5, v26\nv_exp_f32 v27, v27")
            for j in range(16): e(f"v_sub_f32 v{NM(qh)+j}, v{NM(qh)+j}, v26")
            if has_qk:
                for j in range(16): e(f"v_sub_f32 v{S(nxt, qh)+j}, v{S(nxt, qh)+j}, v26")
            for j in range(16): e(f"v_sub_f32 v{S(cur, qh)+j}, v{S(cur, qh)+j}, v26")
            e(f"v_mul_f32 v{Lr(qh)}, v{Lr(qh)}, v27\nv_mul_f32 v{Lr(qh)}, v{Lr(qh)}, v27")
            for l in softmax(cur, qh): e(l)
            for j0 in range(0, 64, 8):
                for j in range(8): e(f"v_accvgpr_read_b32 v{48+j}, a{64*qh+j0+j}")
                for j in range(8): e(f"v_mul_f32 v{48+j}, v{48+j}, v27")
                for j in range(8): e(f"v_mul_f32 v{48+j}, v{48+j}, v27")
                for j in range(8): e(f"v_accvgpr_write_b32 a{64*qh+j0+j}, v{48+j}")
        e("s_nop 1")
        e(f"s_branch {ret}")
    return k
```

```python
from fw import K, R, autowait
from layout import *
from k_gemm import prep_w13

def k_gemms(mode, D=8, rot=None, stamps=False, pol='', loop=True):
    cfg = dict(A=dict(name="gemma_kernel", K=4096, act=OF, w=WOF), C=dict(name="gemmc_kernel", K=1792, act=HHF, w=W2F))[mode]
    KS = cfg["K"] // 16; KS4 = KS // 4
    D = min(D, KS4)
    if loop and KS4 % D: D = 7
    if rot is None: rot = KS4 // 8
    ng = 256 + (128 if mode == "A" else 0)
    k = K(cfg["name"], (ng, 1, 1), 256, lds=49152, vgpr=128, agpr=16 * D, sgpr=72)
    e = k.e
    ACC = 64
    done = k.lab("done"); prep = k.lab("prep")
    e(f"s_cmp_ge_u32 s2, {ng}\ns_cbranch_scc1 {done}")
    if mode == "A": e(f"s_cmp_ge_u32 s2, 256\ns_cbranch_scc1 {prep}")
    if stamps: k.stamps_on({"A": 2, "C": 4}[mode])
    k.stamp()
    e(f"s_load_dwordx2 s[8:9], s[0:1], {KA['ws']}")
    e(f"s_load_dwordx2 s[10:11], s[0:1], {KA['x'] if mode == 'A' else KA['out']}")
    e("v_and_b32 v1, 63, v0\nv_lshrrev_b32 v2, 6, v0\nv_lshlrev_b32 v3, 4, v1\nv_readfirstlane_b32 s40, v2")
    e("s_and_b32 s41, s2, 7\ns_lshl_b32 s41, s41, 2\ns_bfe_u32 s42, s2, 0x20003\ns_add_u32 s41, s41, s42\ns_lshr_b32 s42, s2, 5")
    e("s_and_b32 s50, s40, 1\ns_lshr_b32 s51, s40, 1")
    e("s_lshl_b32 s52, s41, 1\ns_add_u32 s52, s52, s51")
    e(f"s_mul_i32 s45, s52, {KS*1024}\ns_xor_b32 s46, s52, 1\ns_mul_i32 s46, s46, {KS*1024}")
    e(f"s_mul_i32 s47, s42, {KS*2048}")
    e("s_lshl_b32 s43, s50, 10\nv_add_u32 v4, s43, v3\nv_xor_b32 v5, 1024, v4")
    e(f"s_and_b32 s59, s2, 7\ns_mul_i32 s59, s59, {rot*4}\ns_add_u32 s59, s59, s40")
    e("s_waitcnt lgkmcnt(0)")
    k.srd(12, 8, 9, 8 * KS * 2048, off=cfg["w"])
    k.srd(20, 8, 9, 64 * KS * 1024, off=cfg["act"])
    k.stamp()
    FR = lambda s, j: 16 * (s % D) + 4 * j
    def loads(s):
        e(f"s_lshl_b32 s60, s59, 10\ns_add_u32 s61, s60, s45\ns_add_u32 s62, s60, s46\ns_lshl_b32 s60, s59, 11\ns_add_u32 s63, s60, s47")
        e(f"buffer_load_dwordx4 {R('a', FR(s, 2), 4)}, v3, s[20:23], s61 offen")
        e(f"buffer_load_dwordx4 {R('a', FR(s, 0), 4)}, v4, s[12:15], s63 offen")
        e(f"s_add_u32 s59, s59, 4\ns_sub_u32 s60, s59, {KS}\ns_cselect_b32 s59, s59, s60")
        e(f"buffer_load_dwordx4 {R('a', FR(s, 1), 4)}, v5, s[12:15], s63 offen")
        e(f"buffer_load_dwordx4 {R('a', FR(s, 3), 4)}, v3, s[20:23], s62 offen")
    for s in range(2): loads(s)
    k.srd(24, 8, 9, 3072 * 4, off=MODF)
    k.srd(28, 8, 9, 0x200000, off=X1F)
    k.srd(32, 10, 11, 0x200000)
    ch = 2 if mode == "A" else 5
    e("v_lshrrev_b32 v15, 5, v1\nv_lshlrev_b32 v15, 5, v15")
    e(f"s_lshl_b32 s53, s42, 8\ns_lshl_b32 s54, s50, 7\ns_add_u32 s53, s53, s54\ns_add_u32 s53, s53, {ch*2048}")
    e("v_and_b32 v40, 31, v1\nv_lshlrev_b32 v40, 10, v40\nv_lshrrev_b32 v41, 5, v1\nv_lshl_add_u32 v40, v41, 4, v40")
    e("s_lshl_b32 s55, s52, 15\ns_lshl_b32 s56, s42, 7\ns_add_u32 s55, s55, s56\ns_lshl_b32 s56, s50, 6\ns_add_u32 s55, s55, s56")
    e("s_lshl_b32 s56, s52, 15\ns_lshl_b32 s57, s42, 12\ns_add_u32 s56, s56, s57\ns_lshl_b32 s57, s50, 11\ns_add_u32 s56, s56, s57")
    def epi_loads():
        for j in range(4):
            e(f"buffer_load_dwordx4 v[{16+4*j}:{19+4*j}], v15, s[24:27], s53 offen offset:{(j>>1)*64+(j&1)*16}")
        if mode == "A":
            e("buffer_load_dwordx4 v[32:35], v40, s[32:35], s55 offen\nbuffer_load_dwordx4 v[36:39], v40, s[32:35], s55 offen offset:32")
        else:
            e("buffer_load_dwordx4 v[32:35], v3, s[28:31], s56 offen\nbuffer_load_dwordx4 v[36:39], v3, s[28:31], s56 offen offset:1024")
    for j in range(1, 4):
        e(f"s_xor_b32 s58, s40, {j}\ns_mul_i32 s58, s58, 12288\nv_add_u32 v{8+j}, s58, v3")
    e("s_mul_i32 s58, s40, 12288\nv_add_u32 v8, s58, v3")
    order = ((0, 2), (1, 2), (1, 3), (0, 3))
    def mfmas(s, zero=False, waits=None):
        for j, (a, b) in enumerate(order):
            ai = {(0, 2): 0, (1, 2): 1, (0, 3): 2, (1, 3): 3}[(a, b)]
            acc = R('v', ACC + 16 * ai, 16)
            if waits is not None and j < 3: e(f"s_waitcnt vmcnt({waits-2-j})")
            e(f"v_mfma_f32_32x32x16_bf16 {acc}, {R('a', FR(s, a), 4)}, {R('a', FR(s, b), 4)}, {0 if zero else acc}")
    if not loop:
        for s in range(2, D): loads(s)
        k.stamp(); k.stamp()
        for s in range(KS4):
            mfmas(s, zero=(s == 0))
            if s + D < KS4: loads(s + D)
            if s + D == KS4: epi_loads()
    else:
        epi_loads()
        for s in range(2, D): loads(s)
        for j in range(64): e(f"v_mov_b32 v{ACC+j}, 0")
        e(f"s_mov_b32 s44, {KS4//D-1}")
        k.stamp(); k.stamp()
        k.L = autowait(k.L)
        lp = k.lab("loop"); k.label(lp)
        for s in range(D):
            mfmas(s, waits=4 * D)
            loads(s)
        e(f"s_sub_u32 s44, s44, 1\ns_cmp_lg_u32 s44, 0\ns_cbranch_scc1 {lp}")
        for s in range(D): mfmas(s, waits=4 * (D - s))
    L1 = len(k.L)
    k.stamp()
    for j in range(8): e(f"v_lshlrev_b32 v{44+2*j}, 16, v{32+j}\nv_and_b32 v{45+2*j}, 0xffff0000, v{32+j}")
    for j in (1, 3, 2):
        for q in range(4): e(f"ds_write_b128 v{8+j}, {R('v', ACC+16*j+4*q, 4)} offset:{(j-1)*4096+q*1024}")
    e("s_waitcnt lgkmcnt(0)\ns_barrier")
    for j in range(1, 4):
        for q in range(4): e(f"ds_read_b128 {R('v', ACC+16*j+4*q, 4)}, v8 offset:{(j-1)*4096+q*1024}")
    for j in range(16): e(f"v_add_f32 v{ACC+j}, v{ACC+j}, v{ACC+16+j}")
    for j in range(16): e(f"v_add_f32 v{ACC+j}, v{ACC+j}, v{ACC+32+j}")
    for j in range(16): e(f"v_add_f32 v{ACC+j}, v{ACC+j}, v{ACC+48+j}")
    F = list(range(ACC, ACC + 16)); T = list(range(ACC + 16, ACC + 24))
    for j in range(16): e(f"v_fma_f32 v{F[j]}, v{16+j}, v{F[j]}, v{44+j}")
    for j in range(8): e(f"v_cvt_pk_bf16_f32 v{T[j]}, v{F[2*j]}, v{F[2*j+1]}")
    if mode == "A":
        e(f"buffer_store_dwordx4 {R('v', T[0], 4)}, v3, s[28:31], s56 offen {pol}\nbuffer_store_dwordx4 {R('v', T[4], 4)}, v3, s[28:31], s56 offen offset:1024 {pol}")
        for j in range(8): e(f"v_lshlrev_b32 v{F[2*j]}, 16, v{T[j]}\nv_and_b32 v{F[2*j+1]}, 0xffff0000, v{T[j]}")
        e(f"v_add_f32 v16, v{F[0]}, v{F[1]}\nv_mul_f32 v17, v{F[0]}, v{F[0]}\nv_add_f32 v18, v{F[2]}, v{F[3]}\nv_mul_f32 v19, v{F[1]}, v{F[1]}")
        e(f"v_fmac_f32 v17, v{F[2]}, v{F[2]}\nv_fmac_f32 v19, v{F[3]}, v{F[3]}")
        for j in range(4, 16): e(f"v_add_f32 v{16+2*(j&1)}, v{16+2*(j&1)}, v{F[j]}\nv_fmac_f32 v{17+2*(j&1)}, v{F[j]}, v{F[j]}")
        e("v_add_f32 v16, v16, v18\nv_add_f32 v17, v17, v19")
        e("v_mov_b32 v18, v16\nv_mov_b32 v19, v17\ns_nop 1\nv_permlane32_swap_b32 v16, v18\nv_permlane32_swap_b32 v17, v19")
        e("v_add_f32 v16, v16, v18\nv_add_f32 v17, v17, v19")
        k.srd(24, 8, 9, 2048 * 128, off=RST)
        e("v_lshlrev_b32 v18, 7, v1")
        e("s_lshl_b32 s53, s52, 12\ns_lshl_b32 s54, s42, 4\ns_add_u32 s53, s53, s54\ns_lshl_b32 s54, s50, 3\ns_add_u32 s53, s53, s54")
        e("s_mov_b64 exec, 0xffffffff")
        e("buffer_store_dwordx2 v[16:17], v18, s[24:27], s53 offen")
    else:
        e(f"buffer_store_dwordx4 {R('v', T[0], 4)}, v40, s[32:35], s55 offen\nbuffer_store_dwordx4 {R('v', T[4], 4)}, v40, s[32:35], s55 offen offset:32")
    k.L = (k.L[:L1] + autowait(k.L[L1:])) if loop else autowait(k.L)
    k.stamp_flush(40, 4)
    k.label(done)
    e("s_endpgm")
    if mode == "A": prep_w13(k, prep, done)
    return k
```
